```python
import torch

def _softmax(x, axis=-1):
    return torch.softmax(x, dim=axis)
def _gelu(x):
    return torch.nn.functional.gelu(x, approximate="tanh")
def _silu(x):
    return torch.nn.functional.silu(x)
def _sigmoid(x):
    return torch.sigmoid(x)
def _layernorm(x, axis=-1, eps=1e-5):
    m = x.mean(dim=axis, keepdim=True)
    v = x.var(dim=axis, keepdim=True, unbiased=False)
    return (x - m) / torch.sqrt(v + eps)
def _scatter_add(tgt, idx, src, axis=0):
    return tgt.clone().index_add_(axis, idx, src)
def _segment_sum(src, seg, n):
    out = torch.zeros((n,) + src.shape[1:], dtype=src.dtype)
    return out.index_add_(0, seg, src)
def _pad(x, pw):
    flat = tuple(v for pair in reversed(pw) for v in pair)
    return torch.nn.functional.pad(x, flat)

kernel_name = 'standalone__mha_softmax__near_ridge'

def setup_inputs():

    _w = (lambda a: (lambda t: t.to(torch.bfloat16) if t.is_floating_point() else t)(torch.as_tensor(a)))
    B, H, Sq, Sk, D = 8, 32, 624, 1024, 128
    return {
        "q": _w((lambda *s: torch.randn(*s, dtype=torch.bfloat16) * 0.8)(B, H, Sq, D)),
        "k": _w((lambda *s: torch.randn(*s, dtype=torch.bfloat16) * 0.8)(B, H, Sk, D)),
        "v": _w((lambda *s: torch.randn(*s, dtype=torch.bfloat16) * 0.05)(B, H, Sk, D)),
    }

def reference(q, k, v):
    scale = q.shape[-1] ** -0.5
    scores = torch.einsum("bhqd,bhkd->bhqk", q, k) * scale
    p = _softmax(scores, axis=-1)
    return torch.einsum("bhqk,bhkd->bhqd", p, v)
```

```python
import re

def regs_of(tok):
    tok = tok.strip()
    m = re.fullmatch(r'-?(?:abs\()?([vas])(\d+)\)?', tok)
    if m:
        return [m.group(1) + m.group(2)]
    m = re.fullmatch(r'-?([vas])\[(\d+):(\d+)\]', tok)
    if m:
        return [m.group(1) + str(i) for i in range(int(m.group(2)), int(m.group(3)) + 1)]
    if tok in ('vcc', 'm0', 'exec'):
        return [tok]
    return []

TRANS = ('v_exp_f32', 'v_log_f32', 'v_rcp_f32', 'v_rsq_f32', 'v_sqrt_f32')

class Ins:
    def __init__(self, text):
        self.text = text
        t = text.split(';')[0].strip()
        self.op = t.split()[0] if t else ''
        self.rd, self.wr = set(), set()
        self.srcc = []
        self.dst = []
        self.ab = set()
        self.kind = 'other'
        if not t or t.endswith(':') or t.startswith('.'):
            self.kind = 'pseudo'
            return
        rest = t[len(self.op):].strip()
        ops = [o.strip() for o in rest.split(',')] if rest else []
        if ops:
            last = ops[-1].split()
            ops[-1] = last[0] if last else ''
            self.mods = last[1:]
        else:
            self.mods = []
        R = [regs_of(o) for o in ops]
        op = self.op
        if op.startswith('v_mfma'):
            self.kind = 'mfma'
            self.dst = R[0]; self.wr = set(R[0]); self.ab = set(R[1] + R[2]); self.srcc = R[3]
            self.rd = self.ab | set(R[3])
        elif op.startswith('v_smfmac'):
            self.kind = 'mfma'
            self.dst = R[0]; self.wr = set(R[0]); self.ab = set(R[1] + R[2] + R[3]); self.srcc = R[0]
            self.rd = self.ab | set(R[0])
        elif op.startswith('v_permlane'):
            self.kind = 'valu'; self.wr = set(R[0] + R[1]); self.rd = set(R[0] + R[1])
        elif op.startswith('v_cmp'):
            self.kind = 'valu'; self.wr = set(R[0]); self.rd = set(sum(R[1:], []))
        elif op.startswith('v_'):
            self.kind = 'trans' if op.replace('_e32', '').replace('_e64', '') in TRANS else 'valu'
            self.wr = set(R[0]); self.rd = set(sum(R[1:], []))
            if op.startswith('v_fmac') or op.startswith('v_writelane'):
                self.rd |= set(R[0])
        elif op.startswith('ds_read'):
            self.kind = 'ds'; self.wr = set(R[0]); self.rd = set(R[1])
        elif op.startswith('ds_write'):
            self.kind = 'ds'; self.rd = set(sum(R, []))
        elif op.startswith('ds_bpermute') or op.startswith('ds_swizzle'):
            self.kind = 'ds'; self.wr = set(R[0]); self.rd = set(sum(R[1:], []))
        elif op.startswith('buffer_load') or op.startswith('global_load'):
            self.kind = 'vmem'
            if 'lds' in self.mods or '_lds_' in op:
                self.rd = set(sum(R, [])) | {'m0'}
            else:
                self.wr = set(R[0]); self.rd = set(sum(R[1:], []))
        elif op.startswith('buffer_store') or op.startswith('global_store'):
            self.kind = 'vmem'; self.rd = set(sum(R, []))
            self.sdata = R[0] if op.startswith('buffer') else R[1]
        elif op == 's_waitcnt':
            self.kind = 'wait'
            m = re.search(r'vmcnt\((\d+)\)', t); self.vm = int(m.group(1)) if m else None
            m = re.search(r'lgkmcnt\((\d+)\)', t); self.lgkm = int(m.group(1)) if m else None
        elif op == 's_nop':
            self.kind = 'nop'; self.n = int(ops[0]) + 1
        elif op.startswith('s_load') or op in ('s_memtime', 's_memrealtime'):
            self.kind = 'smem'; self.wr = set(R[0]); self.rd = set(sum(R[1:], []))
        elif op.startswith('s_cmp') or op.startswith('s_bitcmp'):
            self.kind = 'salu'; self.rd = set(sum(R, []))
        elif op.startswith('s_cbranch') or op in ('s_branch', 's_barrier', 's_endpgm', 's_setprio'):
            self.kind = 'ctl'
        elif op.startswith('s_'):
            self.kind = 'salu'; self.wr = set(R[0]); self.rd = set(sum(R[1:], []))
            if op.startswith('s_addk') or op.startswith('s_bitset'):
                self.rd |= set(R[0])
        else:
            raise ValueError("unknown instruction " + text)

def check(trace, name=""):
    probs = []
    pos = 0
    lastw = {}
    lastc = {}
    laststore = {}
    ds_out, vm_out = [], []
    smem_out = []
    for ins in trace:
        k = ins.kind
        if k == 'pseudo':
            continue
        def need(r, n, why, tab=lastw):
            p = tab.get(r)
            if p is not None and pos - p[0] - 1 < n:
                probs.append(f"{name}: {why}: '{p[1].text}' -> '{ins.text}' has {pos - p[0] - 1} < {n}")
        touched = ins.rd | ins.wr
        for q, nm in ((ds_out, 'lgkm'), (vm_out, 'vm'), (smem_out, 'smem')):
            for o in q:
                if o.wr & touched:
                    probs.append(f"{name}: unwaited {nm} result: '{o.text}' -> '{ins.text}'")
        for r in ins.rd:
            p = lastw.get(r)
            if not p:
                continue
            w = p[1]
            if w.kind == 'mfma':
                big = 12 if ('smfmac' in w.op or '32x32' in w.op) else 8
                if k == 'mfma':
                    if r in ins.ab:
                        need(r, big, "mfma D -> mfma A/B")
                    elif ins.srcc != w.dst or ins.op != w.op:
                        need(r, big - 2, "mfma D -> mfma C overlap")
                elif k in ('valu', 'trans', 'ds', 'vmem'):
                    need(r, big, "mfma D -> read")
            elif w.kind in ('valu', 'trans'):
                if r[0] in 'va' and r != 'vcc':
                    if k == 'mfma':
                        need(r, 2, "valu -> mfma")
                    if ins.op.startswith('v_permlane') or 'dpp' in ins.op:
                        need(r, 2, "valu -> permlane/dpp")
                    if ins.op.startswith('v_readfirstlane') or ins.op.startswith('v_readlane'):
                        need(r, 1, "valu -> readlane")
                    if w.kind == 'trans' and k == 'valu':
                        need(r, 1, "trans -> valu")
                else:
                    if k == 'vmem':
                        need(r, 5, "valu sgpr -> vmem")
                    if k in ('valu', 'trans'):
                        need(r, 2, "valu sgpr -> valu")
                    if k == 'salu':
                        need(r, 1, "valu sgpr -> salu")
            elif w.kind == 'salu' and r == 'm0' and k == 'vmem':
                need(r, 1, "m0 -> lds dma")
        for r in ins.wr:
            p = lastw.get(r)
            if p and p[1].kind == 'mfma':
                big = 12 if ('smfmac' in p[1].op or '32x32' in p[1].op) else 8
                if k in ('valu', 'trans', 'ds', 'vmem'):
                    need(r, big, "mfma D -> WAW")
                elif k == 'mfma' and ins.srcc != p[1].dst:
                    need(r, big - 2, "mfma D -> mfma WAW")
            if k in ('valu', 'trans'):
                need(r, 7, "mfma C read -> valu WAR", lastc)
                need(r, 2, "store data WAR", laststore)
            elif k in ('ds', 'vmem', 'mfma'):
                need(r, 1, "store data WAR", laststore)
        if k == 'wait':
            if ins.vm is not None:
                while len(vm_out) > ins.vm:
                    vm_out.pop(0)
            if ins.lgkm is not None:
                if smem_out and ins.lgkm != 0:
                    probs.append(f"{name}: counted lgkmcnt with SMEM outstanding: {ins.text}")
                if ins.lgkm == 0:
                    smem_out = []
                while len(ds_out) > ins.lgkm:
                    ds_out.pop(0)
        if k == 'ds':
            ds_out.append(ins)
        if k == 'vmem':
            vm_out.append(ins)
            if len(vm_out) > 63:
                probs.append(f"{name}: more than 63 vmem outstanding at {ins.text}")
            if hasattr(ins, 'sdata'):
                for r in ins.sdata:
                    laststore[r] = (pos, ins)
        if k == 'smem':
            smem_out.append(ins)
        for r in ins.wr:
            lastw[r] = (pos, ins)
        if k == 'mfma':
            for r in ins.srcc:
                lastc[r] = (pos, ins)
        pos += ins.n if k == 'nop' else 1
    return probs
```

```python
import sys, struct, math
from asmlib import Ins, check

KN = "standalone__mha_softmax__near_ridge_kernel"
NT = 5
OPT = dict(stamps=0)

def O(t, db): return 32 * t + 4 * db
S0 = 160
P0 = 176
NM0 = 192
VKA = 212
VVA = 216
VDK, VDV, VIDX, VQO, VOO = 224, 225, 226, 227, 228
VT = 229
def S(n): return S0 + 8 * (n & 1)
def P(n): return P0 + 4 * (n & 3)
def NM(t): return NM0 + 4 * t
def AQ(t, ks): return 16 * t + 4 * ks
def AK(par, j, ks): return 80 + 32 * par + 16 * j + 4 * ks
def AV(par, db): return 144 + 32 * par + 4 * db
AONE = 208
def AL(k): return 212 + 4 * k
SK, SV, SQ, SO = 12, 16, 20, 24
sOff, sWL, sCnt, sPass, sC, sFlag, sW, sHalf, sHead = 28, 29, 30, 31, 32, 34, 35, 36, 37
sT = 40
sTmp = 46
sStamp = 56
VBASE = 65536
HEADQ = 624 * 256
HEADK = 1024 * 256

def vr(b, n=4): return f"v[{b}:{b+n-1}]"
def ar(b, n=4): return f"a[{b}:{b+n-1}]"
def sr(b, n=4): return f"s[{b}:{b+n-1}]"
def f32(x): return "0x%08x" % struct.unpack("<I", struct.pack("<f", x))[0]

class Seg(list):
    def e(self, *lines):
        for l in lines:
            for x in l.split("\n"):
                if x.strip():
                    self.append(Ins(x.strip()))

nstamp = [0]
def stamp(s):
    if OPT['stamps']:
        k = nstamp[0]; nstamp[0] += 1
        s.e(f"s_memrealtime s[{sTmp}:{sTmp+1}]", f"s_memtime s[{sTmp+2}:{sTmp+3}]", "s_waitcnt lgkmcnt(0)",
            f"v_mov_b32 v{VT+20}, s{sTmp}", f"v_mov_b32 v{VT+21}, s{sTmp+2}",
            f"ds_write_b32 v{VT+22}, v{VT+20}", f"ds_write_b32 v{VT+22}, v{VT+21} offset:4",
            f"v_add_u32 v{VT+22}, 8, v{VT+22}", "s_waitcnt lgkmcnt(0)")

def frag_reads(b):
    par, slot, hb = b & 1, (b >> 1) & 3, b & 1
    r = []
    for j in range(2):
        for ks in range(4):
            r.append(f"ds_read_b128 {ar(AK(par, j, ks))}, v{VKA+ks} offset:{slot*16384 + hb*8192 + j*4096}")
    for db in range(8):
        for u in range(2):
            r.append(f"ds_read_b64_tr_b16 {ar(AV(par, db) + 2*u, 2)}, v{VVA+db} offset:{slot*16384 + hb*8192 + u*4096}")
    return r

def dma(slot, part):
    i, isv = part >> 1, part & 1
    m0 = f"s_add_u32 m0, s{sWL}, {isv*VBASE + slot*16384 + i*4096}"
    ld = f"buffer_load_dwordx4 v{VDV if isv else VDK}, {sr(SV if isv else SK)}, s{sOff} offen lds"
    adv = f"s_add_u32 s{sOff}, s{sOff}, 4096" if isv else None
    return m0, ld, adv

def step(n, extras=True):
    mf = []
    if n + 1 <= 159:
        t, b = (n + 1) % 5, (n + 1) // 5
        for j in range(2):
            d = S(n + 1) + 4 * j
            for ks in range(4):
                c = vr(NM(t)) if ks == 0 else vr(d)
                mf.append(f"v_mfma_f32_16x16x32_bf16 {vr(d)}, {ar(AK(b & 1, j, ks))}, {ar(AQ(t, ks))}, {c}")
    sm = None
    if n >= 2 and n % 2 == 0:
        sm = f"v_smfmac_f32_16x16x64_bf16 {ar(AL(((n - 2) // 2) % 5))}, {ar(AONE)}, {vr(P(n - 2), 8)}, v{VIDX}"
    pv = []
    if n - 1 >= 0:
        t, b = (n - 1) % 5, (n - 1) // 5
        for db in range(8):
            c = "0" if b == 0 else vr(O(t, db))
            pv.append(f"v_mfma_f32_16x16x32_bf16 {vr(O(t, db))}, {ar(AV(b & 1, db))}, {vr(P(n - 1))}, {c}")
    ex, cv = [], []
    if 0 <= n <= 159:
        s = S(n)
        ex = [f"v_exp_f32 v{s+k}, v{s+k}" for k in range(8)]
        cv = [f"v_cvt_pk_bf16_f32 v{P(n)+k}, v{s+2*k}, v{s+2*k+1}" for k in range(4)]
    rd, dm = [], None
    wb, wi = (n - 1) // 5, (n - 1) % 5
    if extras:
        rd = frag_reads(wb + 1)[5 * wi:5 * wi + 5]
        p = (n - 6) % 10
        if p < 8:
            dm = dma(((n - 6) // 10) & 3, p)
    out = Seg()
    full = len(mf) == 8 and len(pv) == 8
    if full:
        seq = mf + pv
        sc = {g: [] for g in range(16)}
        fl = {g: [] for g in range(16)}
        for k in range(8):
            fl[2 * k].append(ex[k])
        rg = [1, 3, 7, 9, 11] if wi != 4 else [1, 3, 7, 9]
        for g, r in zip(rg, rd):
            fl[g].append(r)
        for k in range(4):
            fl[4 * k + 3].append(cv[k])
        if dm:
            sc[1].append(dm[0]); fl[5].append(dm[1])
            if dm[2]:
                sc[7].append(dm[2])
        if n % 10 == 6:
            sc[0].append("s_barrier")
        if wi == 2:
            sc[15].append("s_waitcnt lgkmcnt(7)")
        if wi == 4:
            sc[15].append("s_waitcnt vmcnt(16) lgkmcnt(0)" if n % 10 == 5 else "s_waitcnt lgkmcnt(0)")
        if n % 40 == 38:
            sc[12].append(f"s_sub_u32 s{sCnt}, s{sCnt}, 1")
            sc[14].append(f"s_cmp_lg_u32 s{sCnt}, 0")
        for g in range(16):
            out.e(seq[g], *sc[g], *fl[g])
            if g == 7 and sm:
                out.e(sm)
        return out
    if n == -1:
        out.e(*mf, "s_nop 3")
    elif n == 0:
        for g in range(8):
            out.e(mf[g])
            if g >= 2 and g % 2 == 0:
                out.e(cv[g // 2 - 1])
            out.e(ex[g])
        out.e("s_nop 0", cv[3])
    elif n == 159:
        out.e("s_nop 1", dm[0])
        for g in range(8):
            out.e(pv[g])
            if g < len(rd):
                out.e(rd[g])
            if g == 6:
                out.e(dm[1])
            if g >= 2 and g % 2 == 0:
                out.e(cv[g // 2 - 1])
            out.e(ex[g])
        if dm[2]:
            out.e(dm[2])
        out.e("s_nop 0", cv[3], "s_nop 1")
    elif n == 160:
        out.e(dm[0], sm)
        for g in range(8):
            out.e(pv[g])
            if g < len(rd):
                out.e(rd[g])
            if g == 6:
                out.e(dm[1])
        if dm[2]:
            out.e(dm[2])
    return out

def q_loads(s):
    for t in range(NT):
        for ks in range(4):
            s.e(f"buffer_load_dwordx4 {ar(AQ(t, ks))}, v{VQO}, {sr(SQ)}, s{sT+t} offen offset:{64*ks}")

def set_srd_rows(s, srd, ptr, passreg_is_next):
    a, b, c = sTmp, sTmp + 1, sTmp + 2
    s.e(f"s_add_u32 s{a}, s{sPass}, {1 if passreg_is_next else 0}",
        f"s_xor_b32 s{b}, s{sHalf}, s{a}", f"s_and_b32 s{b}, s{b}, 1",
        f"s_mul_i32 s{b}, s{b}, {320*256}",
        f"s_mul_i32 s{c}, s{sW}, {80*256}", f"s_add_u32 s{b}, s{b}, s{c}",
        f"s_add_u32 s{a}, s{a}, s{sHead}", f"s_mul_i32 s{a}, s{a}, {HEADQ}",
        f"s_add_u32 s{a}, s{a}, s{b}",
        f"s_add_u32 s{srd}, s{ptr}, s{a}", f"s_addc_u32 s{srd+1}, s{ptr+1}, 0",
        f"s_sub_u32 s{srd+2}, {HEADQ}, s{b}", f"s_mov_b32 s{srd+3}, 0x20000")

def prologue():
    s = Seg()
    T = VT
    s.e("s_cmp_ge_u32 s2, 256", "s_cbranch_scc1 L_end",
        "s_load_dwordx4 s[4:7], s[0:1], 0", "s_load_dwordx4 s[8:11], s[0:1], 16")
    if OPT['stamps']:
        s.e(f"s_load_dwordx2 s[{sStamp}:{sStamp+1}], s[0:1], 40")
    s.e(f"v_lshrrev_b32 v{T}, 6, v0", f"v_and_b32 v{T+1}, 63, v0", f"v_lshlrev_b32 v{T+2}, 6, v0",
        f"v_readfirstlane_b32 s{sW}, v{T}",
        f"s_getpc_b64 s[{sTmp}:{sTmp+1}]")
    s.e(f"global_load_dword v1, v{T+2}, s[{sTmp}:{sTmp+1}]",
        f"v_add_u32 v{T+2}, 0x4000, v{T+2}", f"v_min_u32 v{T+2}, L_code_end-{KN}-64, v{T+2}",
        f"global_load_dword v2, v{T+2}, s[{sTmp}:{sTmp+1}]")
    if OPT['stamps']:
        s.e(f"v_lshlrev_b32 v{VT+22}, 8, v{T}", f"v_add_u32 v{VT+22}, 0x20000, v{VT+22}")
    s.e(f"s_and_b32 s{sHead}, s2, 7", f"s_lshl_b32 s{sHead}, s{sHead}, 5",
        f"s_lshr_b32 s3, s2, 3", f"s_and_b32 s{sHalf}, s3, 1", f"s_and_b32 s3, s3, 30",
        f"s_add_u32 s{sHead}, s{sHead}, s3",
        f"s_lshl_b32 s{sWL}, s{sW}, 10", f"s_mov_b32 s{sPass}, 0", f"s_mov_b32 s{sFlag}, 0",
        f"s_mov_b32 s{sC}, {f32(math.log2(math.e) / math.sqrt(128.0))}", f"s_mov_b32 s{sC+1}, s{sC}")
    for t in range(NT):
        s.e(f"s_mov_b32 s{sT+t}, {4096*t}")
    L, Q16, G = T + 1, T + 3, T + 4
    s.e(f"v_and_b32 v{Q16}, 15, v{L}", f"v_lshrrev_b32 v{G}, 4, v{L}")
    R = T + 5
    s.e(f"v_lshl_add_u32 v{R}, v{T}, 2, v{G}",
        f"v_xor_b32 v{T+6}, v{Q16}, v{R}", f"v_lshlrev_b32 v{T+6}, 4, v{T+6}",
        f"v_lshl_add_u32 v{VDK}, v{R}, 8, v{T+6}",
        f"v_and_b32 v{T+6}, 7, v{R}", f"v_lshlrev_b32 v{T+6}, 1, v{T+6}", f"v_xor_b32 v{T+6}, v{Q16}, v{T+6}",
        f"v_lshlrev_b32 v{T+6}, 4, v{T+6}", f"v_lshl_add_u32 v{VDV}, v{R}, 8, v{T+6}",
        f"v_lshlrev_b32 v{T+6}, 4, v{G}", f"v_lshl_add_u32 v{VQO}, v{Q16}, 8, v{T+6}")
    s.e("s_waitcnt lgkmcnt(0)")
    stamp(s)
    s.e(f"s_mul_i32 s3, s{sHead}, {HEADK}",
        f"s_add_u32 s{SK}, s6, s3", f"s_addc_u32 s{SK+1}, s7, 0", f"s_mov_b32 s{SK+2}, {2*HEADK}", f"s_mov_b32 s{SK+3}, 0x20000",
        f"s_add_u32 s{SV}, s8, s3", f"s_addc_u32 s{SV+1}, s9, 0", f"s_mov_b32 s{SV+2}, {2*HEADK}", f"s_mov_b32 s{SV+3}, 0x20000",
        f"s_mov_b32 s{sOff}, 0")
    def dmas(slot, parts):
        for p in parts:
            m0, ld, adv = dma(slot, p)
            s.e(m0, "s_nop 0", ld)
            if adv:
                s.e(adv)
    dmas(0, range(8))
    set_srd_rows(s, SQ, 4, False)
    q_loads(s)
    dmas(1, range(8)); dmas(2, range(8)); dmas(3, range(5))
    for ks in range(4):
        s.e(f"v_add_u32 v{T+6}, {4*ks}, v{G}", f"v_xor_b32 v{T+6}, v{T+6}, v{Q16}", f"v_lshlrev_b32 v{T+6}, 4, v{T+6}",
            f"v_lshl_add_u32 v{VKA+ks}, v{Q16}, 8, v{T+6}")
    s.e(f"v_lshrrev_b32 v{T+6}, 2, v{L}", f"v_and_b32 v{T+7}, 3, v{L}", f"v_lshlrev_b32 v{T+7}, 3, v{T+7}",
        f"v_lshl_add_u32 v{T+7}, v{T+6}, 8, v{T+7}", f"v_add_u32 v{T+7}, {VBASE}, v{T+7}",
        f"v_and_b32 v{T+6}, 7, v{T+6}")
    for db in range(8):
        s.e(f"v_xor_b32 v{T+8}, {db}, v{T+6}", f"v_lshl_add_u32 v{VVA+db}, v{T+8}, 5, v{T+7}")
    s.e(f"v_and_b32 v{T+6}, 1, v{G}", f"v_lshlrev_b32 v{T+6}, 5, v{T+6}", f"v_lshrrev_b32 v{T+7}, 1, v{G}",
        f"v_lshl_add_u32 v{T+6}, v{T+7}, 4, v{T+6}", f"v_lshl_add_u32 v{VOO}, v{Q16}, 8, v{T+6}")
    s.e(f"v_and_b32 v{T+6}, 1, v{L}", f"v_mul_u32_u24 v{T+6}, 0xaaaa, v{T+6}", f"v_add_u32 v{VIDX}, 0x4444, v{T+6}",
        f"v_lshrrev_b32 v{T+6}, 1, v{L}", f"v_lshrrev_b32 v{T+7}, 5, v{L}", f"v_xor_b32 v{T+6}, v{T+6}, v{T+7}",
        f"v_and_b32 v{T+6}, 1, v{T+6}", f"v_add_u32 v{T+6}, -1, v{T+6}", f"v_and_b32 v{T+6}, 0x3f803f80, v{T+6}")
    for r in range(4):
        s.e(f"v_accvgpr_write_b32 a{AONE+r}, v{T+6}")
    s.e("s_waitcnt vmcnt(41)", "s_barrier")
    s.e(*frag_reads(0))
    return s

def pass_head():
    s = Seg()
    s.e("L_pass:")
    for k in range(20):
        s.e(f"v_accvgpr_write_b32 a{AL(0)+k}, 0")
    T = S0
    for t in range(NT):
        s.e(f"s_waitcnt vmcnt({20 + 4*(NT-1-t)})")
        if t == 0:
            stamp(s)
        for h in range(4):
            base = AQ(t, h)
            for r in range(4):
                s.e(f"v_accvgpr_read_b32 v{T+r}, a{base+r}")
            for r in range(4):
                s.e(f"v_lshlrev_b32 v{T+4+2*r}, 16, v{T+r}", f"v_and_b32 v{T+5+2*r}, 0xffff0000, v{T+r}")
            for r in range(4):
                s.e(f"v_pk_mul_f32 {vr(T+4+2*r, 2)}, {vr(T+4+2*r, 2)}, {sr(sC, 2)}")
            for r in range(4):
                s.e(f"v_cvt_pk_bf16_f32 v{T+r}, v{T+4+2*r}, v{T+5+2*r}")
            for r in range(4):
                s.e(f"v_accvgpr_write_b32 a{base+r}, v{T+r}")
    s.e("s_waitcnt lgkmcnt(0)", "s_nop 0")
    stamp(s)
    for t in range(NT):
        for ks in range(4):
            c = "0" if ks == 0 else vr(NM(t))
            s.e(f"v_mfma_f32_16x16x32_bf16 {vr(NM(t))}, {ar(AK(0, 0, ks))}, {ar(AQ(t, ks))}, {c}")
    s.e("s_nop 7")
    for t in range(NT):
        n = NM(t)
        s.e(f"v_max3_f32 v{n}, v{n}, v{n+1}, v{n+2}")
    for t in range(NT):
        n = NM(t)
        s.e(f"v_max_f32 v{n}, v{n}, v{n+3}")
    for sw in ("v_permlane16_swap_b32", "v_permlane32_swap_b32"):
        for t in range(NT):
            s.e(f"v_mov_b32 v{NM(t)+1}, v{NM(t)}")
        for t in range(NT):
            if t == 3:
                s.e("s_nop 0")
            s.e(f"{sw} v{NM(t)}, v{NM(t)+1}")
        for t in range(NT):
            s.e(f"v_max_f32 v{NM(t)}, v{NM(t)}, v{NM(t)+1}")
    for t in range(NT):
        n = NM(t)
        for r in (3, 2, 1, 0):
            s.e(f"v_sub_f32 v{n+r}, 0, v{n}")
    s.e(f"s_mov_b32 s{sCnt}, 4", "s_nop 0")
    s.extend(step(-1, False)); s.extend(step(0, False))
    for n in range(1, 6):
        s.extend(step(n))
    s.e("s_branch L_enter")
    return s

def epilogue():
    s = Seg()
    stamp(s)
    s.e(f"s_cmp_lg_u32 s{sPass}, 0", "s_cbranch_scc1 L_noq")
    q = Seg()
    set_srd_rows(q, SQ, 4, True)
    q_loads(q)
    e = Seg()
    e.e("L_noq:")
    set_srd_rows(e, SO, 10, False)
    T = S0
    for k in range(20):
        e.e(f"v_accvgpr_read_b32 v{T+k}, a{AL(0)+k}")
    for k in range(10):
        e.e(f"v_add_f32 v{T+2*k}, v{T+2*k}, v{T+2*k+1}")
    Lr = T + 20
    for t in range(NT):
        e.e(f"v_add_f32 v{Lr+2*t}, v{T+2*t}, v{T+2*(t+5)}")
    e.e(f"v_max3_f32 v{T}, v{Lr}, v{Lr+2}, v{Lr+4}", f"v_max3_f32 v{T}, v{T}, v{Lr+6}, v{Lr+8}")
    for t in range(NT):
        e.e(f"v_rcp_f32 v{Lr+2*t}, v{Lr+2*t}")
    for t in range(NT):
        for u in range(4):
            b = O(t, 2 * u)
            for k in range(4):
                e.e(f"v_pk_mul_f32 {vr(b+2*k, 2)}, {vr(b+2*k, 2)}, {vr(Lr+2*t, 2)} op_sel_hi:[1,0]")
            for k in range(4):
                e.e(f"v_cvt_pk_bf16_f32 v{b+k}, v{b+2*k}, v{b+2*k+1}")
        e.e("s_nop 0")
        for u in range(4):
            b = O(t, 2 * u)
            e.e(f"v_permlane16_swap_b32 v{b}, v{b+2}", f"v_permlane16_swap_b32 v{b+1}, v{b+3}",
                f"buffer_store_dwordx4 {vr(b)}, v{VOO}, {sr(SO)}, s{sT+t} offen offset:{64*u}")
    stamp(e)
    e.e(f"s_add_u32 s{sPass}, s{sPass}, 1", f"s_cmp_lg_u32 s{sPass}, 2", "s_cbranch_scc1 L_pass")
    return s, q, e

def build():
    nstamp[0] = 0
    pro = prologue()
    head = pass_head()
    order = [39] + list(range(40, 79))
    body = {n: step(n) for n in order}
    tail = Seg(); tail.extend(step(159)); tail.extend(step(160))
    e0, eq, e1 = epilogue()
    fin = Seg()
    if OPT['stamps']:
        fin.e("s_waitcnt vmcnt(0)")
        stamp(fin)
        fin.e(f"v_mbcnt_lo_u32_b32 v0, -1, 0", "v_mbcnt_hi_u32_b32 v0, -1, v0", "v_lshlrev_b32 v0, 2, v0",
              f"s_lshl_b32 s3, s{sW}, 8", "v_add_u32 v0, s3, v0", "v_add_u32 v1, 0x20000, v0",
              "ds_read_b32 v2, v1", "s_lshl_b32 s3, s2, 10", "v_add_u32 v0, s3, v0", "s_waitcnt lgkmcnt(0)",
              f"global_store_dword v0, v2, s[{sStamp}:{sStamp+1}]")
    fin.e("L_end:", "s_endpgm")
    text = Seg()
    text.extend(pro); text.extend(head)
    text.e(".p2align 6", "L_loop:")
    for n in order:
        if n == 46:
            text.e("L_enter:")
        text.extend(body[n])
    text.e("s_cbranch_scc1 L_loop")
    text.extend(tail); text.extend(e0); text.extend(eq); text.extend(e1); text.extend(fin)
    tr = Seg(); tr.extend(pro)
    for p in range(2):
        tr.extend(head)
        for n in range(6, 159):
            tr.extend(body[(n - 39) % 40 + 39])
            if n % 40 == 38:
                tr.e("s_cbranch_scc1 L_loop")
        tr.extend(tail); tr.extend(e0)
        if p == 0:
            tr.extend(eq)
        tr.extend(e1)
    tr.extend(fin)
    probs = check(tr, "trace")
    for p in sorted(set(probs))[:40]:
        print(p, file=sys.stderr)
    if probs:
        print(len(probs), "problems", file=sys.stderr)
    hdr = open("standalone__mha_softmax__near_ridge.s.ref").read().split("; Override launch")[0]
    out = hdr + "; @launch grid=(256,1,1) block=(256,1,1) lds=163840\n"
    out += f'.amdgcn_target "amdgcn-amd-amdhsa--gfx950"\n.text\n.globl {KN}\n.p2align 8\n.type {KN},@function\n{KN}:\n'
    for i in text:
        out += ("" if i.kind == 'pseudo' else "    ") + i.text + "\n"
    out += ".p2align 6\nL_code_end:\n"
    out += f'''.section .rodata,"a"
.p2align 6
.amdhsa_kernel {KN}
  .amdhsa_next_free_vgpr 512
  .amdhsa_next_free_sgpr 96
  .amdhsa_accum_offset 256
  .amdhsa_group_segment_fixed_size 0
  .amdhsa_kernarg_size 48
  .amdhsa_user_sgpr_count 2
  .amdhsa_user_sgpr_kernarg_segment_ptr 1
  .amdhsa_system_sgpr_workgroup_id_x 1
.end_amdhsa_kernel
'''
    return out

if __name__ == "__main__":
    path = sys.argv[1]
    for a in sys.argv[2:]:
        k, v = a.split("=")
        OPT[k] = int(v)
    open(path, "w").write(build())
```

```python
import sys, struct, math
from asmlib import Ins, check

KN = "standalone__mha_softmax__near_ridge_kernel"
NT = 5
OPT = dict(stamps=0, probe=-1, pa=0, pb=0, kvpol=0, qpol=0, opol=0)
POL = ['', ' nt', ' sc1', ' sc1 nt', ' sc0 sc1', ' sc0 sc1 nt', ' sc0', ' sc0 nt']

def O(t, db): return 32 * t + 4 * db
S0 = 160
P0 = 176
NM0 = 192
VKA = 212
VVA = 216
VDK, VDV, VIDX, VQO, VOO = 224, 225, 226, 227, 228
VT = 229
def S(n): return S0 + 8 * (n & 1)
def P(n): return P0 + 4 * (n & 3)
def NM(t): return NM0 + 4 * t
def AQ(t, ks): return 16 * t + 4 * ks
def AK(par, j, ks): return 80 + 32 * par + 16 * j + 4 * ks
def AV(par, db): return 144 + 32 * par + 4 * db
AONE = 208
def AL(k): return 212 + 4 * k
SK, SV, SQ, SO = 12, 16, 20, 24
sOff, sWL, sCnt, sPass, sC, sFlag, sW, sHalf, sHead = 28, 29, 30, 31, 32, 34, 35, 36, 37
sT = 40
sTmp = 46
sStamp = 56
VBASE = 65536
HEADQ = 624 * 256
HEADK = 1024 * 256

def vr(b, n=4): return f"v[{b}:{b+n-1}]"
def ar(b, n=4): return f"a[{b}:{b+n-1}]"
def sr(b, n=4): return f"s[{b}:{b+n-1}]"
def f32(x): return "0x%08x" % struct.unpack("<I", struct.pack("<f", x))[0]

class Seg(list):
    def e(self, *lines):
        for l in lines:
            for x in l.split("\n"):
                if x.strip():
                    self.append(Ins(x.strip()))

nstamp = [0]
def stamp(s):
    if OPT['stamps']:
        k = nstamp[0]; nstamp[0] += 1
        s.e(f"s_memrealtime s[{sTmp}:{sTmp+1}]", f"s_memtime s[{sTmp+2}:{sTmp+3}]", "s_waitcnt lgkmcnt(0)",
            f"v_mov_b32 v{VT+20}, s{sTmp}", f"v_mov_b32 v{VT+21}, s{sTmp+2}",
            f"ds_write_b32 v{VT+22}, v{VT+20}", f"ds_write_b32 v{VT+22}, v{VT+21} offset:4",
            f"v_add_u32 v{VT+22}, 8, v{VT+22}", "s_waitcnt lgkmcnt(0)")

def frag_reads(b):
    par, slot, hb = b & 1, (b >> 1) & 3, b & 1
    r = []
    for j in range(2):
        for ks in range(4):
            r.append(f"ds_read_b128 {ar(AK(par, j, ks))}, v{VKA+ks} offset:{slot*16384 + hb*8192 + j*4096}")
    for db in range(8):
        for u in range(2):
            r.append(f"ds_read_b64_tr_b16 {ar(AV(par, db) + 2*u, 2)}, v{VVA+db} offset:{slot*16384 + hb*8192 + u*4096}")
    return r

def dma(slot, part):
    i, isv = part >> 1, part & 1
    m0 = f"s_add_u32 m0, s{sWL}, {isv*VBASE + slot*16384 + i*4096}"
    ld = f"buffer_load_dwordx4 v{VDV if isv else VDK}, {sr(SV if isv else SK)}, s{sOff} offen{POL[OPT['kvpol']]} lds"
    adv = f"s_add_u32 s{sOff}, s{sOff}, 4096" if isv else None
    return m0, ld, adv

def step(n, extras=True):
    mf = []
    if n + 1 <= 159:
        t, b = (n + 1) % 5, (n + 1) // 5
        for j in range(2):
            d = S(n + 1) + 4 * j
            for ks in range(4):
                c = vr(NM(t)) if ks == 0 else vr(d)
                mf.append(f"v_mfma_f32_16x16x32_bf16 {vr(d)}, {ar(AK(b & 1, j, ks))}, {ar(AQ(t, ks))}, {c}")
    sm = None
    if n >= 2 and n % 2 == 0:
        sm = f"v_smfmac_f32_16x16x64_bf16 {ar(AL(((n - 2) // 2) % 5))}, {ar(AONE)}, {vr(P(n - 2), 8)}, v{VIDX}"
    pv = []
    if n - 1 >= 0:
        t, b = (n - 1) % 5, (n - 1) // 5
        for db in range(8):
            c = "0" if b == 0 else vr(O(t, db))
            pv.append(f"v_mfma_f32_16x16x32_bf16 {vr(O(t, db))}, {ar(AV(b & 1, db))}, {vr(P(n - 1))}, {c}")
    ex, cv = [], []
    if 0 <= n <= 159:
        s = S(n)
        ex = [f"v_exp_f32 v{s+k}, v{s+k}" for k in range(8)]
        cv = [f"v_cvt_pk_bf16_f32 v{P(n)+k}, v{s+2*k}, v{s+2*k+1}" for k in range(4)]
    rd, dm = [], None
    wb, wi = (n - 1) // 5, (n - 1) % 5
    if extras:
        rd = frag_reads(wb + 1)[5 * wi:5 * wi + 5]
        p = (n - 6) % 10
        if p < 8:
            dm = dma(((n - 6) // 10) & 3, p)
    out = Seg()
    full = len(mf) == 8 and len(pv) == 8
    if full:
        seq = mf + pv
        sc = {g: [] for g in range(16)}
        fl = {g: [] for g in range(16)}
        for k in range(8):
            fl[2 * k].append(ex[k])
        rg = [1, 3, 7, 9, 11] if wi != 4 else [1, 3, 7, 9]
        for g, r in zip(rg, rd):
            fl[g].append(r)
        for k in range(4):
            fl[4 * k + 3].append(cv[k])
        if dm:
            sc[1].append(dm[0]); fl[5].append(dm[1])
            if dm[2]:
                sc[7].append(dm[2])
        if n % 10 == 6:
            sc[0].append("s_barrier")
        if wi == 2:
            sc[15].append("s_waitcnt lgkmcnt(7)")
        if wi == 4:
            sc[15].append("s_waitcnt vmcnt(16) lgkmcnt(0)" if n % 10 == 5 else "s_waitcnt lgkmcnt(0)")
        if n % 40 == 38:
            sc[12].append(f"s_sub_u32 s{sCnt}, s{sCnt}, 1")
            sc[14].append(f"s_cmp_lg_u32 s{sCnt}, 0")
        for g in range(16):
            out.e(seq[g], *sc[g], *fl[g])
            if g == 7 and sm:
                out.e(sm)
        return out
    if n == -1:
        out.e(*mf, "s_nop 3")
    elif n == 0:
        for g in range(8):
            out.e(mf[g])
            if g >= 2 and g % 2 == 0:
                out.e(cv[g // 2 - 1])
            out.e(ex[g])
        out.e("s_nop 0", cv[3])
    elif n == 159:
        out.e("s_nop 1", dm[0])
        for g in range(8):
            out.e(pv[g])
            if g < len(rd):
                out.e(rd[g])
            if g == 6:
                out.e(dm[1])
            if g >= 2 and g % 2 == 0:
                out.e(cv[g // 2 - 1])
            out.e(ex[g])
        if dm[2]:
            out.e(dm[2])
        out.e("s_nop 0", cv[3], "s_nop 1")
    elif n == 160:
        out.e(dm[0], sm)
        for g in range(8):
            out.e(pv[g])
            if g < len(rd):
                out.e(rd[g])
            if g == 6:
                out.e(dm[1])
        if dm[2]:
            out.e(dm[2])
    return out

def q_loads(s):
    for t in range(NT):
        for ks in range(4):
            s.e(f"buffer_load_dwordx4 {ar(AQ(t, ks))}, v{VQO}, {sr(SQ)}, s{sT+t} offen offset:{64*ks}{POL[OPT['qpol']]}")

def set_srd_rows(s, srd, ptr, passreg_is_next):
    a, b, c = sTmp, sTmp + 1, sTmp + 2
    s.e(f"s_add_u32 s{a}, s{sPass}, {1 if passreg_is_next else 0}",
        f"s_xor_b32 s{b}, s{sHalf}, s{a}", f"s_and_b32 s{b}, s{b}, 1",
        f"s_mul_i32 s{b}, s{b}, {320*256}",
        f"s_mul_i32 s{c}, s{sW}, {80*256}", f"s_add_u32 s{b}, s{b}, s{c}",
        f"s_add_u32 s{a}, s{a}, s{sHead}", f"s_mul_i32 s{a}, s{a}, {HEADQ}",
        f"s_add_u32 s{a}, s{a}, s{b}",
        f"s_add_u32 s{srd}, s{ptr}, s{a}", f"s_addc_u32 s{srd+1}, s{ptr+1}, 0",
        f"s_sub_u32 s{srd+2}, {HEADQ}, s{b}", f"s_mov_b32 s{srd+3}, 0x20000")

def prologue():
    s = Seg()
    T = VT
    s.e("s_cmp_ge_u32 s2, 256", "s_cbranch_scc1 L_end",
        "s_load_dwordx4 s[4:7], s[0:1], 0", "s_load_dwordx4 s[8:11], s[0:1], 16")
    if OPT['stamps']:
        s.e(f"s_load_dwordx2 s[{sStamp}:{sStamp+1}], s[0:1], 40")
    s.e(f"v_lshrrev_b32 v{T}, 6, v0", f"v_and_b32 v{T+1}, 63, v0", f"v_lshlrev_b32 v{T+2}, 6, v0",
        f"v_readfirstlane_b32 s{sW}, v{T}",
        f"s_getpc_b64 s[{sTmp}:{sTmp+1}]")
    s.e(f"global_load_dword v1, v{T+2}, s[{sTmp}:{sTmp+1}]",
        f"v_add_u32 v{T+2}, 0x4000, v{T+2}", f"v_min_u32 v{T+2}, L_code_end-{KN}-64, v{T+2}",
        f"global_load_dword v2, v{T+2}, s[{sTmp}:{sTmp+1}]")
    if OPT['stamps']:
        s.e(f"v_lshlrev_b32 v{VT+22}, 8, v{T}", f"v_add_u32 v{VT+22}, 0x20000, v{VT+22}")
    s.e(f"s_and_b32 s{sHead}, s2, 7", f"s_lshl_b32 s{sHead}, s{sHead}, 5",
        f"s_lshr_b32 s3, s2, 3", f"s_and_b32 s{sHalf}, s3, 1", f"s_and_b32 s3, s3, 30",
        f"s_add_u32 s{sHead}, s{sHead}, s3",
        f"s_lshl_b32 s{sWL}, s{sW}, 10", f"s_mov_b32 s{sPass}, 0", f"s_mov_b32 s{sFlag}, 0",
        f"s_mov_b32 s{sC}, {f32(math.log2(math.e) / math.sqrt(128.0))}", f"s_mov_b32 s{sC+1}, s{sC}")
    for t in range(NT):
        s.e(f"s_mov_b32 s{sT+t}, {4096*t}")
    L, Q16, G = T + 1, T + 3, T + 4
    s.e(f"v_and_b32 v{Q16}, 15, v{L}", f"v_lshrrev_b32 v{G}, 4, v{L}")
    R = T + 5
    s.e(f"v_lshl_add_u32 v{R}, v{T}, 2, v{G}",
        f"v_xor_b32 v{T+6}, v{Q16}, v{R}", f"v_lshlrev_b32 v{T+6}, 4, v{T+6}",
        f"v_lshl_add_u32 v{VDK}, v{R}, 8, v{T+6}",
        f"v_and_b32 v{T+6}, 7, v{R}", f"v_lshlrev_b32 v{T+6}, 1, v{T+6}", f"v_xor_b32 v{T+6}, v{Q16}, v{T+6}",
        f"v_lshlrev_b32 v{T+6}, 4, v{T+6}", f"v_lshl_add_u32 v{VDV}, v{R}, 8, v{T+6}",
        f"v_lshlrev_b32 v{T+6}, 4, v{G}", f"v_lshl_add_u32 v{VQO}, v{Q16}, 8, v{T+6}")
    s.e("s_waitcnt lgkmcnt(0)")
    stamp(s)
    s.e(f"s_mul_i32 s3, s{sHead}, {HEADK}",
        f"s_add_u32 s{SK}, s6, s3", f"s_addc_u32 s{SK+1}, s7, 0", f"s_mov_b32 s{SK+2}, {2*HEADK}", f"s_mov_b32 s{SK+3}, 0x20000",
        f"s_add_u32 s{SV}, s8, s3", f"s_addc_u32 s{SV+1}, s9, 0", f"s_mov_b32 s{SV+2}, {2*HEADK}", f"s_mov_b32 s{SV+3}, 0x20000",
        f"s_mov_b32 s{sOff}, 0")
    def dmas(slot, parts):
        for p in parts:
            m0, ld, adv = dma(slot, p)
            s.e(m0, "s_nop 0", ld)
            if adv:
                s.e(adv)
    dmas(0, range(8))
    set_srd_rows(s, SQ, 4, False)
    q_loads(s)
    dmas(1, range(8)); dmas(2, range(8)); dmas(3, range(5))
    for ks in range(4):
        s.e(f"v_add_u32 v{T+6}, {4*ks}, v{G}", f"v_xor_b32 v{T+6}, v{T+6}, v{Q16}", f"v_lshlrev_b32 v{T+6}, 4, v{T+6}",
            f"v_lshl_add_u32 v{VKA+ks}, v{Q16}, 8, v{T+6}")
    s.e(f"v_lshrrev_b32 v{T+6}, 2, v{L}", f"v_and_b32 v{T+7}, 3, v{L}", f"v_lshlrev_b32 v{T+7}, 3, v{T+7}",
        f"v_lshl_add_u32 v{T+7}, v{T+6}, 8, v{T+7}", f"v_add_u32 v{T+7}, {VBASE}, v{T+7}",
        f"v_and_b32 v{T+6}, 7, v{T+6}")
    for db in range(8):
        s.e(f"v_xor_b32 v{T+8}, {db}, v{T+6}", f"v_lshl_add_u32 v{VVA+db}, v{T+8}, 5, v{T+7}")
    s.e(f"v_and_b32 v{T+6}, 1, v{G}", f"v_lshlrev_b32 v{T+6}, 5, v{T+6}", f"v_lshrrev_b32 v{T+7}, 1, v{G}",
        f"v_lshl_add_u32 v{T+6}, v{T+7}, 4, v{T+6}", f"v_lshl_add_u32 v{VOO}, v{Q16}, 8, v{T+6}")
    s.e(f"v_and_b32 v{T+6}, 1, v{L}", f"v_mul_u32_u24 v{T+6}, 0xaaaa, v{T+6}", f"v_add_u32 v{VIDX}, 0x4444, v{T+6}",
        f"v_lshrrev_b32 v{T+6}, 1, v{L}", f"v_lshrrev_b32 v{T+7}, 5, v{L}", f"v_xor_b32 v{T+6}, v{T+6}, v{T+7}",
        f"v_and_b32 v{T+6}, 1, v{T+6}", f"v_add_u32 v{T+6}, -1, v{T+6}", f"v_and_b32 v{T+6}, 0x3f803f80, v{T+6}")
    for r in range(4):
        s.e(f"v_accvgpr_write_b32 a{AONE+r}, v{T+6}")
    s.e("s_waitcnt vmcnt(41)", "s_barrier")
    s.e(*frag_reads(0))
    return s

def pass_head():
    s = Seg()
    s.e("L_pass:")
    for k in range(20):
        s.e(f"v_accvgpr_write_b32 a{AL(0)+k}, 0")
    T = S0
    for t in range(NT):
        s.e(f"s_waitcnt vmcnt({20 + 4*(NT-1-t)})")
        if t == 0:
            stamp(s)
        for h in range(4):
            base = AQ(t, h)
            for r in range(4):
                s.e(f"v_accvgpr_read_b32 v{T+r}, a{base+r}")
            for r in range(4):
                s.e(f"v_lshlrev_b32 v{T+4+2*r}, 16, v{T+r}", f"v_and_b32 v{T+5+2*r}, 0xffff0000, v{T+r}")
            for r in range(4):
                s.e(f"v_pk_mul_f32 {vr(T+4+2*r, 2)}, {vr(T+4+2*r, 2)}, {sr(sC, 2)}")
            for r in range(4):
                s.e(f"v_cvt_pk_bf16_f32 v{T+r}, v{T+4+2*r}, v{T+5+2*r}")
            for r in range(4):
                s.e(f"v_accvgpr_write_b32 a{base+r}, v{T+r}")
    s.e("s_waitcnt lgkmcnt(0)", "s_nop 0")
    stamp(s)
    for t in range(NT):
        for ks in range(4):
            c = "0" if ks == 0 else vr(NM(t))
            s.e(f"v_mfma_f32_16x16x32_bf16 {vr(NM(t))}, {ar(AK(0, 0, ks))}, {ar(AQ(t, ks))}, {c}")
    s.e("s_nop 7")
    for t in range(NT):
        n = NM(t)
        s.e(f"v_max3_f32 v{n}, v{n}, v{n+1}, v{n+2}")
    for t in range(NT):
        n = NM(t)
        s.e(f"v_max_f32 v{n}, v{n}, v{n+3}")
    for sw in ("v_permlane16_swap_b32", "v_permlane32_swap_b32"):
        for t in range(NT):
            s.e(f"v_mov_b32 v{NM(t)+1}, v{NM(t)}")
        for t in range(NT):
            if t == 3:
                s.e("s_nop 0")
            s.e(f"{sw} v{NM(t)}, v{NM(t)+1}")
        for t in range(NT):
            s.e(f"v_max_f32 v{NM(t)}, v{NM(t)}, v{NM(t)+1}")
    for t in range(NT):
        n = NM(t)
        for r in (3, 2, 1, 0):
            s.e(f"v_sub_f32 v{n+r}, 0, v{n}")
    s.e(f"s_mov_b32 s{sCnt}, 4", "s_nop 0")
    s.extend(step(-1, False)); s.extend(step(0, False))
    for n in range(1, 6):
        s.extend(step(n))
    s.e("s_branch L_enter")
    return s

def epilogue():
    s = Seg()
    stamp(s)
    s.e(f"s_cmp_lg_u32 s{sPass}, 0", "s_cbranch_scc1 L_noq")
    q = Seg()
    set_srd_rows(q, SQ, 4, True)
    q_loads(q)
    e = Seg()
    e.e("L_noq:")
    set_srd_rows(e, SO, 10, False)
    T = S0
    for k in range(20):
        e.e(f"v_accvgpr_read_b32 v{T+k}, a{AL(0)+k}")
    for k in range(10):
        e.e(f"v_add_f32 v{T+2*k}, v{T+2*k}, v{T+2*k+1}")
    Lr = T + 20
    for t in range(NT):
        e.e(f"v_add_f32 v{Lr+2*t}, v{T+2*t}, v{T+2*(t+5)}")
    e.e(f"v_max3_f32 v{T}, v{Lr}, v{Lr+2}, v{Lr+4}", f"v_max3_f32 v{T}, v{T}, v{Lr+6}, v{Lr+8}")
    for t in range(NT):
        e.e(f"v_rcp_f32 v{Lr+2*t}, v{Lr+2*t}")
    for t in range(NT):
        for u in range(4):
            b = O(t, 2 * u)
            for k in range(4):
                e.e(f"v_pk_mul_f32 {vr(b+2*k, 2)}, {vr(b+2*k, 2)}, {vr(Lr+2*t, 2)} op_sel_hi:[1,0]")
            for k in range(4):
                e.e(f"v_cvt_pk_bf16_f32 v{b+k}, v{b+2*k}, v{b+2*k+1}")
        e.e("s_nop 0")
        for u in range(4):
            b = O(t, 2 * u)
            e.e(f"v_permlane16_swap_b32 v{b}, v{b+2}", f"v_permlane16_swap_b32 v{b+1}, v{b+3}",
                f"buffer_store_dwordx4 {vr(b)}, v{VOO}, {sr(SO)}, s{sT+t} offen offset:{64*u}{POL[OPT['opol']]}")
    stamp(e)
    e.e(f"s_add_u32 s{sPass}, s{sPass}, 1", f"s_cmp_lg_u32 s{sPass}, 2", "s_cbranch_scc1 L_pass")
    return s, q, e

def build():
    nstamp[0] = 0
    pro = prologue()
    head = pass_head()
    order = [39] + list(range(40, 79))
    body = {n: step(n) for n in order}
    tail = Seg(); tail.extend(step(159)); tail.extend(step(160))
    e0, eq, e1 = epilogue()
    fin = Seg()
    if OPT['stamps']:
        fin.e("s_waitcnt vmcnt(0)")
        stamp(fin)
        fin.e(f"v_mbcnt_lo_u32_b32 v0, -1, 0", "v_mbcnt_hi_u32_b32 v0, -1, v0", "v_lshlrev_b32 v0, 2, v0",
              f"s_lshl_b32 s3, s{sW}, 8", "v_add_u32 v0, s3, v0", "v_add_u32 v1, 0x20000, v0",
              "ds_read_b32 v2, v1", "s_lshl_b32 s3, s2, 10", "v_add_u32 v0, s3, v0", "s_waitcnt lgkmcnt(0)",
              f"global_store_dword v0, v2, s[{sStamp}:{sStamp+1}]")
    if OPT['probe'] >= 0:
        a, b = OPT['pa'], OPT['pb']
        fin.e(f"v_mov_b32 v0, s{sW}", "v_lshlrev_b32 v0, 8, v0", "v_add_u32 v0, 0x20000, v0",
              "ds_read_b64 v[2:3], v0", f"ds_read_b64 v[4:5], v0 offset:{8*a}", f"ds_read_b64 v[6:7], v0 offset:{8*b}",
              "s_waitcnt lgkmcnt(0)", "v_sub_u32 v6, v6, v4", "v_sub_u32 v7, v7, v5")
        if OPT['probe'] == 0:
            fin.e("v_mov_b32 v6, 5000")
        elif OPT['probe'] == 1:
            fin.e("v_lshlrev_b32 v6, 2, v6")
        else:
            fin.e("v_lshrrev_b32 v6, 3, v7")
        fin.e("v_add_u32 v6, 10000, v6", "s_nop 1", "v_readfirstlane_b32 s60, v6", "v_readfirstlane_b32 s61, v2", "s_nop 3",
              "L_spin:", "s_memrealtime s[62:63]", "s_waitcnt lgkmcnt(0)", "s_sub_u32 s62, s62, s61",
              "s_cmp_lt_u32 s62, s60", "s_cbranch_scc1 L_spin")
    fin.e("L_end:", "s_endpgm")
    text = Seg()
    text.extend(pro); text.extend(head)
    text.e(".p2align 6", "L_loop:")
    for n in order:
        if n == 46:
            text.e("L_enter:")
        text.extend(body[n])
    text.e("s_cbranch_scc1 L_loop")
    text.extend(tail); text.extend(e0); text.extend(eq); text.extend(e1); text.extend(fin)
    tr = Seg(); tr.extend(pro)
    for p in range(2):
        tr.extend(head)
        for n in range(6, 159):
            tr.extend(body[(n - 39) % 40 + 39])
            if n % 40 == 38:
                tr.e("s_cbranch_scc1 L_loop")
        tr.extend(tail); tr.extend(e0)
        if p == 0:
            tr.extend(eq)
        tr.extend(e1)
    tr.extend(fin)
    probs = check(tr, "trace")
    for p in sorted(set(probs))[:40]:
        print(p, file=sys.stderr)
    if probs:
        print(len(probs), "problems", file=sys.stderr)
    hdr = open("standalone__mha_softmax__near_ridge.s.ref").read().split("; Override launch")[0]
    out = hdr + "; @launch grid=(256,1,1) block=(256,1,1) lds=163840\n"
    out += f'.amdgcn_target "amdgcn-amd-amdhsa--gfx950"\n.text\n.globl {KN}\n.p2align 8\n.type {KN},@function\n{KN}:\n'
    for i in text:
        out += ("" if i.kind == 'pseudo' else "    ") + i.text + "\n"
    out += ".p2align 6\nL_code_end:\n"
    out += f'''.section .rodata,"a"
.p2align 6
.amdhsa_kernel {KN}
  .amdhsa_next_free_vgpr 512
  .amdhsa_next_free_sgpr 96
  .amdhsa_accum_offset 256
  .amdhsa_group_segment_fixed_size 0
  .amdhsa_kernarg_size 48
  .amdhsa_user_sgpr_count 2
  .amdhsa_user_sgpr_kernarg_segment_ptr 1
  .amdhsa_system_sgpr_workgroup_id_x 1
.end_amdhsa_kernel
'''
    return out

if __name__ == "__main__":
    path = sys.argv[1]
    for a in sys.argv[2:]:
        k, v = a.split("=")
        OPT[k] = int(v)
    open(path, "w").write(build())
```

```python
import sys, struct, math
from asmlib import Ins, check

KN = "standalone__mha_softmax__near_ridge_kernel"
NT = 5
OPT = dict(stamps=0, early=0, probe=-1, pa=0, pb=0, kvpol=0, qpol=0, opol=0)
POL = ['', ' nt', ' sc1', ' sc1 nt', ' sc0 sc1', ' sc0 sc1 nt', ' sc0', ' sc0 nt']

def O(t, db): return 32 * t + 4 * db
S0 = 160
P0 = 176
NM0 = 192
VKA = 212
VVA = 216
VDK, VDV, VIDX, VQO, VOO = 224, 225, 226, 227, 228
VT = 229
def S(n): return S0 + 8 * (n & 1)
def P(n): return P0 + 4 * (n & 3)
def NM(t): return NM0 + 4 * t
def AQ(t, ks): return 16 * t + 4 * ks
def AK(par, j, ks): return 80 + 32 * par + 16 * j + 4 * ks
def AV(par, db): return 144 + 32 * par + 4 * db
AONE = 208
def AL(k): return 212 + 4 * k
SK, SV, SQ, SO = 12, 16, 20, 24
sOff, sWL, sCnt, sPass, sC, sFlag, sW, sHalf, sHead = 28, 29, 30, 31, 32, 34, 35, 36, 37
sT = 40
sTmp = 46
sStamp = 56
VBASE = 65536
HEADQ = 624 * 256
HEADK = 1024 * 256

def vr(b, n=4): return f"v[{b}:{b+n-1}]"
def ar(b, n=4): return f"a[{b}:{b+n-1}]"
def sr(b, n=4): return f"s[{b}:{b+n-1}]"
def f32(x): return "0x%08x" % struct.unpack("<I", struct.pack("<f", x))[0]

class Seg(list):
    def e(self, *lines):
        for l in lines:
            for x in l.split("\n"):
                if x.strip():
                    self.append(Ins(x.strip()))

nstamp = [0]
def stamp(s):
    if OPT['stamps']:
        k = nstamp[0]; nstamp[0] += 1
        s.e(f"s_memrealtime s[{sTmp}:{sTmp+1}]", f"s_memtime s[{sTmp+2}:{sTmp+3}]", "s_waitcnt lgkmcnt(0)",
            f"v_mov_b32 v{VT+20}, s{sTmp}", f"v_mov_b32 v{VT+21}, s{sTmp+2}",
            f"ds_write_b32 v{VT+22}, v{VT+20}", f"ds_write_b32 v{VT+22}, v{VT+21} offset:4",
            f"v_add_u32 v{VT+22}, 8, v{VT+22}", "s_waitcnt lgkmcnt(0)")

def frag_reads(b):
    par, slot, hb = b & 1, (b >> 1) & 3, b & 1
    r = []
    for j in range(2):
        for ks in range(4):
            r.append(f"ds_read_b128 {ar(AK(par, j, ks))}, v{VKA+ks} offset:{slot*16384 + hb*8192 + j*4096}")
    for db in range(8):
        for u in range(2):
            r.append(f"ds_read_b64_tr_b16 {ar(AV(par, db) + 2*u, 2)}, v{VVA+db} offset:{slot*16384 + hb*8192 + u*4096}")
    return r

def dma(slot, part):
    i, isv = part >> 1, part & 1
    m0 = f"s_add_u32 m0, s{sWL}, {isv*VBASE + slot*16384 + i*4096}"
    ld = f"buffer_load_dwordx4 v{VDV if isv else VDK}, {sr(SV if isv else SK)}, s{sOff} offen{POL[OPT['kvpol']]} lds"
    adv = f"s_add_u32 s{sOff}, s{sOff}, 4096" if isv else None
    return m0, ld, adv

def step(n, extras=True):
    mf = []
    if n + 1 <= 159:
        t, b = (n + 1) % 5, (n + 1) // 5
        for j in range(2):
            d = S(n + 1) + 4 * j
            for ks in range(4):
                c = vr(NM(t)) if ks == 0 else vr(d)
                mf.append(f"v_mfma_f32_16x16x32_bf16 {vr(d)}, {ar(AK(b & 1, j, ks))}, {ar(AQ(t, ks))}, {c}")
    sm = None
    if n >= 2 and n % 2 == 0:
        sm = f"v_smfmac_f32_16x16x64_bf16 {ar(AL(((n - 2) // 2) % 5))}, {ar(AONE)}, {vr(P(n - 2), 8)}, v{VIDX}"
    pv = []
    if n - 1 >= 0:
        t, b = (n - 1) % 5, (n - 1) // 5
        for db in range(8):
            c = "0" if b == 0 else vr(O(t, db))
            pv.append(f"v_mfma_f32_16x16x32_bf16 {vr(O(t, db))}, {ar(AV(b & 1, db))}, {vr(P(n - 1))}, {c}")
    ex, cv = [], []
    if 0 <= n <= 159:
        s = S(n)
        ex = [f"v_exp_f32 v{s+k}, v{s+k}" for k in range(8)]
        cv = [f"v_cvt_pk_bf16_f32 v{P(n)+k}, v{s+2*k}, v{s+2*k+1}" for k in range(4)]
    rd, dm = [], None
    wb, wi = (n - 1) // 5, (n - 1) % 5
    if extras:
        rd = frag_reads(wb + 1)[5 * wi:5 * wi + 5]
        p = (n - 6) % 10
        if p < 8:
            dm = dma(((n - 6) // 10) & 3, p)
    out = Seg()
    full = len(mf) == 8 and len(pv) == 8
    if full:
        seq = mf + pv
        sc = {g: [] for g in range(16)}
        fl = {g: [] for g in range(16)}
        for k in range(8):
            fl[2 * k].append(ex[k])
        rg = [1, 3, 7, 9, 11] if wi != 4 else [1, 3, 7, 9]
        for g, r in zip(rg, rd):
            fl[g].append(r)
        for k in range(4):
            fl[4 * k + 3].append(cv[k])
        if dm:
            sc[1].append(dm[0]); fl[5].append(dm[1])
            if dm[2]:
                sc[7].append(dm[2])
        if n % 10 == 6:
            sc[0].append("s_barrier")
        if wi == 2:
            sc[15].append("s_waitcnt lgkmcnt(7)")
        if wi == 4:
            sc[15].append("s_waitcnt vmcnt(16) lgkmcnt(0)" if n % 10 == 5 else "s_waitcnt lgkmcnt(0)")
        if n % 40 == 38:
            sc[12].append(f"s_sub_u32 s{sCnt}, s{sCnt}, 1")
            sc[14].append(f"s_cmp_lg_u32 s{sCnt}, 0")
        for g in range(16):
            out.e(seq[g], *sc[g], *fl[g])
            if g == 7 and sm:
                out.e(sm)
        return out
    if n == -1:
        out.e(*mf, "s_nop 3")
    elif n == 0:
        for g in range(8):
            out.e(mf[g])
            if g >= 2 and g % 2 == 0:
                out.e(cv[g // 2 - 1])
            out.e(ex[g])
        out.e("s_nop 0", cv[3])
    elif n == 159:
        out.e("s_nop 1", dm[0])
        for g in range(8):
            out.e(pv[g])
            if g < len(rd):
                out.e(rd[g])
            if g == 6:
                out.e(dm[1])
            if g >= 2 and g % 2 == 0:
                out.e(cv[g // 2 - 1])
            out.e(ex[g])
        if dm[2]:
            out.e(dm[2])
        out.e("s_nop 0", cv[3], "s_nop 1")
    elif n == 160:
        out.e(dm[0], sm)
        for g in range(8):
            out.e(pv[g])
            if g < len(rd):
                out.e(rd[g])
            if g == 6:
                out.e(dm[1])
        if dm[2]:
            out.e(dm[2])
    return out

def q_loads(s):
    for t in range(NT):
        for ks in range(4):
            s.e(f"buffer_load_dwordx4 {ar(AQ(t, ks))}, v{VQO}, {sr(SQ)}, s{sT+t} offen offset:{64*ks}{POL[OPT['qpol']]}")

def set_srd_rows(s, srd, ptr, passreg_is_next):
    a, b, c = sTmp, sTmp + 1, sTmp + 2
    s.e(f"s_add_u32 s{a}, s{sPass}, {1 if passreg_is_next else 0}",
        f"s_xor_b32 s{b}, s{sHalf}, s{a}", f"s_and_b32 s{b}, s{b}, 1",
        f"s_mul_i32 s{b}, s{b}, {320*256}",
        f"s_mul_i32 s{c}, s{sW}, {80*256}", f"s_add_u32 s{b}, s{b}, s{c}",
        f"s_add_u32 s{a}, s{a}, s{sHead}", f"s_mul_i32 s{a}, s{a}, {HEADQ}",
        f"s_add_u32 s{a}, s{a}, s{b}",
        f"s_add_u32 s{srd}, s{ptr}, s{a}", f"s_addc_u32 s{srd+1}, s{ptr+1}, 0",
        f"s_sub_u32 s{srd+2}, {HEADQ}, s{b}", f"s_mov_b32 s{srd+3}, 0x20000")

def prologue():
    s = Seg()
    T = VT
    if OPT['early']:
        s.e("s_memrealtime s[64:65]")
    s.e("s_cmp_ge_u32 s2, 256", "s_cbranch_scc1 L_end",
        "s_load_dwordx4 s[4:7], s[0:1], 0", "s_load_dwordx4 s[8:11], s[0:1], 16")
    if OPT['stamps']:
        s.e(f"s_load_dwordx2 s[{sStamp}:{sStamp+1}], s[0:1], 40")
    s.e(f"v_lshrrev_b32 v{T}, 6, v0", f"v_and_b32 v{T+1}, 63, v0", f"v_lshlrev_b32 v{T+2}, 6, v0",
        f"v_readfirstlane_b32 s{sW}, v{T}",
        f"s_getpc_b64 s[{sTmp}:{sTmp+1}]")
    s.e(f"global_load_dword v1, v{T+2}, s[{sTmp}:{sTmp+1}]",
        f"v_add_u32 v{T+2}, 0x4000, v{T+2}", f"v_min_u32 v{T+2}, L_code_end-{KN}-64, v{T+2}",
        f"global_load_dword v2, v{T+2}, s[{sTmp}:{sTmp+1}]")
    if OPT['stamps']:
        s.e(f"v_lshlrev_b32 v{VT+22}, 8, v{T}", f"v_add_u32 v{VT+22}, 0x20000, v{VT+22}")
    s.e(f"s_and_b32 s{sHead}, s2, 7", f"s_lshl_b32 s{sHead}, s{sHead}, 5",
        f"s_lshr_b32 s3, s2, 3", f"s_and_b32 s{sHalf}, s3, 1", f"s_and_b32 s3, s3, 30",
        f"s_add_u32 s{sHead}, s{sHead}, s3",
        f"s_lshl_b32 s{sWL}, s{sW}, 10", f"s_mov_b32 s{sPass}, 0", f"s_mov_b32 s{sFlag}, 0",
        f"s_mov_b32 s{sC}, {f32(math.log2(math.e) / math.sqrt(128.0))}", f"s_mov_b32 s{sC+1}, s{sC}")
    for t in range(NT):
        s.e(f"s_mov_b32 s{sT+t}, {4096*t}")
    L, Q16, G = T + 1, T + 3, T + 4
    s.e(f"v_and_b32 v{Q16}, 15, v{L}", f"v_lshrrev_b32 v{G}, 4, v{L}")
    R = T + 5
    s.e(f"v_lshl_add_u32 v{R}, v{T}, 2, v{G}",
        f"v_xor_b32 v{T+6}, v{Q16}, v{R}", f"v_lshlrev_b32 v{T+6}, 4, v{T+6}",
        f"v_lshl_add_u32 v{VDK}, v{R}, 8, v{T+6}",
        f"v_and_b32 v{T+6}, 7, v{R}", f"v_lshlrev_b32 v{T+6}, 1, v{T+6}", f"v_xor_b32 v{T+6}, v{Q16}, v{T+6}",
        f"v_lshlrev_b32 v{T+6}, 4, v{T+6}", f"v_lshl_add_u32 v{VDV}, v{R}, 8, v{T+6}",
        f"v_lshlrev_b32 v{T+6}, 4, v{G}", f"v_lshl_add_u32 v{VQO}, v{Q16}, 8, v{T+6}")
    s.e("s_waitcnt lgkmcnt(0)")
    stamp(s)
    s.e(f"s_mul_i32 s3, s{sHead}, {HEADK}",
        f"s_add_u32 s{SK}, s6, s3", f"s_addc_u32 s{SK+1}, s7, 0", f"s_mov_b32 s{SK+2}, {2*HEADK}", f"s_mov_b32 s{SK+3}, 0x20000",
        f"s_add_u32 s{SV}, s8, s3", f"s_addc_u32 s{SV+1}, s9, 0", f"s_mov_b32 s{SV+2}, {2*HEADK}", f"s_mov_b32 s{SV+3}, 0x20000",
        f"s_mov_b32 s{sOff}, 0")
    def dmas(slot, parts):
        for p in parts:
            m0, ld, adv = dma(slot, p)
            s.e(m0, "s_nop 0", ld)
            if adv:
                s.e(adv)
    dmas(0, range(8))
    set_srd_rows(s, SQ, 4, False)
    q_loads(s)
    dmas(1, range(8)); dmas(2, range(8)); dmas(3, range(5))
    for ks in range(4):
        s.e(f"v_add_u32 v{T+6}, {4*ks}, v{G}", f"v_xor_b32 v{T+6}, v{T+6}, v{Q16}", f"v_lshlrev_b32 v{T+6}, 4, v{T+6}",
            f"v_lshl_add_u32 v{VKA+ks}, v{Q16}, 8, v{T+6}")
    s.e(f"v_lshrrev_b32 v{T+6}, 2, v{L}", f"v_and_b32 v{T+7}, 3, v{L}", f"v_lshlrev_b32 v{T+7}, 3, v{T+7}",
        f"v_lshl_add_u32 v{T+7}, v{T+6}, 8, v{T+7}", f"v_add_u32 v{T+7}, {VBASE}, v{T+7}",
        f"v_and_b32 v{T+6}, 7, v{T+6}")
    for db in range(8):
        s.e(f"v_xor_b32 v{T+8}, {db}, v{T+6}", f"v_lshl_add_u32 v{VVA+db}, v{T+8}, 5, v{T+7}")
    s.e(f"v_and_b32 v{T+6}, 1, v{G}", f"v_lshlrev_b32 v{T+6}, 5, v{T+6}", f"v_lshrrev_b32 v{T+7}, 1, v{G}",
        f"v_lshl_add_u32 v{T+6}, v{T+7}, 4, v{T+6}", f"v_lshl_add_u32 v{VOO}, v{Q16}, 8, v{T+6}")
    s.e(f"v_and_b32 v{T+6}, 1, v{L}", f"v_mul_u32_u24 v{T+6}, 0xaaaa, v{T+6}", f"v_add_u32 v{VIDX}, 0x4444, v{T+6}",
        f"v_lshrrev_b32 v{T+6}, 1, v{L}", f"v_lshrrev_b32 v{T+7}, 5, v{L}", f"v_xor_b32 v{T+6}, v{T+6}, v{T+7}",
        f"v_and_b32 v{T+6}, 1, v{T+6}", f"v_add_u32 v{T+6}, -1, v{T+6}", f"v_and_b32 v{T+6}, 0x3f803f80, v{T+6}")
    for r in range(4):
        s.e(f"v_accvgpr_write_b32 a{AONE+r}, v{T+6}")
    s.e("s_waitcnt vmcnt(41)", "s_barrier")
    s.e(*frag_reads(0))
    return s

def pass_head():
    s = Seg()
    s.e("L_pass:")
    for k in range(20):
        s.e(f"v_accvgpr_write_b32 a{AL(0)+k}, 0")
    T = S0
    for t in range(NT):
        s.e(f"s_waitcnt vmcnt({20 + 4*(NT-1-t)})")
        if t == 0:
            stamp(s)
        for h in range(4):
            base = AQ(t, h)
            for r in range(4):
                s.e(f"v_accvgpr_read_b32 v{T+r}, a{base+r}")
            for r in range(4):
                s.e(f"v_lshlrev_b32 v{T+4+2*r}, 16, v{T+r}", f"v_and_b32 v{T+5+2*r}, 0xffff0000, v{T+r}")
            for r in range(4):
                s.e(f"v_pk_mul_f32 {vr(T+4+2*r, 2)}, {vr(T+4+2*r, 2)}, {sr(sC, 2)}")
            for r in range(4):
                s.e(f"v_cvt_pk_bf16_f32 v{T+r}, v{T+4+2*r}, v{T+5+2*r}")
            for r in range(4):
                s.e(f"v_accvgpr_write_b32 a{base+r}, v{T+r}")
    s.e("s_waitcnt lgkmcnt(0)", "s_nop 0")
    stamp(s)
    for t in range(NT):
        for ks in range(4):
            c = "0" if ks == 0 else vr(NM(t))
            s.e(f"v_mfma_f32_16x16x32_bf16 {vr(NM(t))}, {ar(AK(0, 0, ks))}, {ar(AQ(t, ks))}, {c}")
    s.e("s_nop 7")
    for t in range(NT):
        n = NM(t)
        s.e(f"v_max3_f32 v{n}, v{n}, v{n+1}, v{n+2}")
    for t in range(NT):
        n = NM(t)
        s.e(f"v_max_f32 v{n}, v{n}, v{n+3}")
    for sw in ("v_permlane16_swap_b32", "v_permlane32_swap_b32"):
        for t in range(NT):
            s.e(f"v_mov_b32 v{NM(t)+1}, v{NM(t)}")
        for t in range(NT):
            if t == 3:
                s.e("s_nop 0")
            s.e(f"{sw} v{NM(t)}, v{NM(t)+1}")
        for t in range(NT):
            s.e(f"v_max_f32 v{NM(t)}, v{NM(t)}, v{NM(t)+1}")
    for t in range(NT):
        n = NM(t)
        for r in (3, 2, 1, 0):
            s.e(f"v_sub_f32 v{n+r}, 0, v{n}")
    s.e(f"s_mov_b32 s{sCnt}, 4", "s_nop 0")
    s.extend(step(-1, False)); s.extend(step(0, False))
    for n in range(1, 6):
        s.extend(step(n))
    s.e("s_branch L_enter")
    return s

def epilogue():
    s = Seg()
    stamp(s)
    s.e(f"s_cmp_lg_u32 s{sPass}, 0", "s_cbranch_scc1 L_noq")
    q = Seg()
    set_srd_rows(q, SQ, 4, True)
    q_loads(q)
    e = Seg()
    e.e("L_noq:")
    set_srd_rows(e, SO, 10, False)
    T = S0
    for k in range(20):
        e.e(f"v_accvgpr_read_b32 v{T+k}, a{AL(0)+k}")
    for k in range(10):
        e.e(f"v_add_f32 v{T+2*k}, v{T+2*k}, v{T+2*k+1}")
    Lr = T + 20
    for t in range(NT):
        e.e(f"v_add_f32 v{Lr+2*t}, v{T+2*t}, v{T+2*(t+5)}")
    e.e(f"v_max3_f32 v{T}, v{Lr}, v{Lr+2}, v{Lr+4}", f"v_max3_f32 v{T}, v{T}, v{Lr+6}, v{Lr+8}")
    for t in range(NT):
        e.e(f"v_rcp_f32 v{Lr+2*t}, v{Lr+2*t}")
    for t in range(NT):
        for u in range(4):
            b = O(t, 2 * u)
            for k in range(4):
                e.e(f"v_pk_mul_f32 {vr(b+2*k, 2)}, {vr(b+2*k, 2)}, {vr(Lr+2*t, 2)} op_sel_hi:[1,0]")
            for k in range(4):
                e.e(f"v_cvt_pk_bf16_f32 v{b+k}, v{b+2*k}, v{b+2*k+1}")
        e.e("s_nop 0")
        for u in range(4):
            b = O(t, 2 * u)
            e.e(f"v_permlane16_swap_b32 v{b}, v{b+2}", f"v_permlane16_swap_b32 v{b+1}, v{b+3}",
                f"buffer_store_dwordx4 {vr(b)}, v{VOO}, {sr(SO)}, s{sT+t} offen offset:{64*u}{POL[OPT['opol']]}")
    stamp(e)
    e.e(f"s_add_u32 s{sPass}, s{sPass}, 1", f"s_cmp_lg_u32 s{sPass}, 2", "s_cbranch_scc1 L_pass")
    return s, q, e

def build():
    nstamp[0] = 0
    pro = prologue()
    head = pass_head()
    order = [39] + list(range(40, 79))
    body = {n: step(n) for n in order}
    tail = Seg(); tail.extend(step(159)); tail.extend(step(160))
    e0, eq, e1 = epilogue()
    fin = Seg()
    if OPT['stamps']:
        fin.e("s_waitcnt vmcnt(0)")
        stamp(fin)
        fin.e(f"v_mbcnt_lo_u32_b32 v0, -1, 0", "v_mbcnt_hi_u32_b32 v0, -1, v0", "v_lshlrev_b32 v0, 2, v0",
              f"s_lshl_b32 s3, s{sW}, 8", "v_add_u32 v0, s3, v0", "v_add_u32 v1, 0x20000, v0",
              "ds_read_b32 v2, v1", "s_lshl_b32 s3, s2, 10", "v_add_u32 v0, s3, v0", "s_waitcnt lgkmcnt(0)",
              f"global_store_dword v0, v2, s[{sStamp}:{sStamp+1}]")
    if OPT['probe'] >= 0:
        a, b = OPT['pa'], OPT['pb']
        fin.e(f"v_mov_b32 v0, s{sW}", "v_lshlrev_b32 v0, 8, v0", "v_add_u32 v0, 0x20000, v0",
              "ds_read_b64 v[2:3], v0", f"ds_read_b64 v[4:5], v0 offset:{8*a}", f"ds_read_b64 v[6:7], v0 offset:{8*b}",
              "s_waitcnt lgkmcnt(0)", "v_sub_u32 v6, v6, v4", "v_sub_u32 v7, v7, v5")
        if OPT['probe'] == 0:
            fin.e("v_mov_b32 v6, 5000")
        elif OPT['probe'] == 1:
            fin.e("v_lshlrev_b32 v6, 2, v6")
        else:
            fin.e("v_lshrrev_b32 v6, 3, v7")
        fin.e("v_add_u32 v6, 10000, v6", "s_nop 1", "v_readfirstlane_b32 s60, v6", "v_readfirstlane_b32 s61, v2", "s_nop 3",
              "s_mov_b32 s61, s64" if OPT['early'] else "s_nop 0",
              "L_spin:", "s_memrealtime s[62:63]", "s_waitcnt lgkmcnt(0)", "s_sub_u32 s62, s62, s61",
              "s_cmp_lt_u32 s62, s60", "s_cbranch_scc1 L_spin")
    fin.e("L_end:", "s_endpgm")
    text = Seg()
    text.extend(pro); text.extend(head)
    text.e(".p2align 6", "L_loop:")
    for n in order:
        if n == 46:
            text.e("L_enter:")
        text.extend(body[n])
    text.e("s_cbranch_scc1 L_loop")
    text.extend(tail); text.extend(e0); text.extend(eq); text.extend(e1); text.extend(fin)
    tr = Seg(); tr.extend(pro)
    for p in range(2):
        tr.extend(head)
        for n in range(6, 159):
            tr.extend(body[(n - 39) % 40 + 39])
            if n % 40 == 38:
                tr.e("s_cbranch_scc1 L_loop")
        tr.extend(tail); tr.extend(e0)
        if p == 0:
            tr.extend(eq)
        tr.extend(e1)
    tr.extend(fin)
    probs = check(tr, "trace")
    for p in sorted(set(probs))[:40]:
        print(p, file=sys.stderr)
    if probs:
        print(len(probs), "problems", file=sys.stderr)
    hdr = open("standalone__mha_softmax__near_ridge.s.ref").read().split("; Override launch")[0]
    out = hdr + "; @launch grid=(256,1,1) block=(256,1,1) lds=163840\n"
    out += f'.amdgcn_target "amdgcn-amd-amdhsa--gfx950"\n.text\n.globl {KN}\n.p2align 8\n.type {KN},@function\n{KN}:\n'
    for i in text:
        out += ("" if i.kind == 'pseudo' else "    ") + i.text + "\n"
    out += ".p2align 6\nL_code_end:\n"
    out += f'''.section .rodata,"a"
.p2align 6
.amdhsa_kernel {KN}
  .amdhsa_next_free_vgpr 512
  .amdhsa_next_free_sgpr 96
  .amdhsa_accum_offset 256
  .amdhsa_group_segment_fixed_size 0
  .amdhsa_kernarg_size 48
  .amdhsa_user_sgpr_count 2
  .amdhsa_user_sgpr_kernarg_segment_ptr 1
  .amdhsa_system_sgpr_workgroup_id_x 1
.end_amdhsa_kernel
'''
    return out

if __name__ == "__main__":
    path = sys.argv[1]
    for a in sys.argv[2:]:
        k, v = a.split("=")
        OPT[k] = int(v)
    open(path, "w").write(build())
```

```python
import re

def regs_of(tok):
    tok = tok.strip()
    m = re.fullmatch(r'-?(?:abs\()?([vas])(\d+)\)?', tok)
    if m:
        return [m.group(1) + m.group(2)]
    m = re.fullmatch(r'-?([vas])\[(\d+):(\d+)\]', tok)
    if m:
        return [m.group(1) + str(i) for i in range(int(m.group(2)), int(m.group(3)) + 1)]
    if tok in ('vcc', 'm0', 'exec'):
        return [tok]
    return []

TRANS = ('v_exp_f32', 'v_log_f32', 'v_rcp_f32', 'v_rsq_f32', 'v_sqrt_f32')

class Ins:
    def __init__(self, text):
        self.text = text
        t = text.split(';')[0].strip()
        self.op = t.split()[0] if t else ''
        self.rd, self.wr = set(), set()
        self.srcc = []
        self.dst = []
        self.ab = set()
        self.kind = 'other'
        if not t or t.endswith(':') or t.startswith('.'):
            self.kind = 'pseudo'
            return
        rest = t[len(self.op):].strip()
        ops = [o.strip() for o in rest.split(',')] if rest else []
        if ops:
            last = ops[-1].split()
            ops[-1] = last[0] if last else ''
            self.mods = last[1:]
        else:
            self.mods = []
        R = [regs_of(o) for o in ops]
        op = self.op
        if op.startswith('v_mfma'):
            self.kind = 'mfma'
            self.dst = R[0]; self.wr = set(R[0]); self.ab = set(R[1] + R[2]); self.srcc = R[3]
            self.rd = self.ab | set(R[3])
        elif op.startswith('v_smfmac'):
            self.kind = 'mfma'
            self.dst = R[0]; self.wr = set(R[0]); self.ab = set(R[1] + R[2] + R[3]); self.srcc = R[0]
            self.rd = self.ab | set(R[0])
        elif op.startswith('v_permlane'):
            self.kind = 'valu'; self.wr = set(R[0] + R[1]); self.rd = set(R[0] + R[1])
        elif op.startswith('v_cmp'):
            self.kind = 'valu'; self.wr = set(R[0]); self.rd = set(sum(R[1:], []))
        elif op.startswith('v_'):
            self.kind = 'trans' if op.replace('_e32', '').replace('_e64', '') in TRANS else 'valu'
            self.wr = set(R[0]); self.rd = set(sum(R[1:], []))
            if op.startswith('v_fmac') or op.startswith('v_writelane'):
                self.rd |= set(R[0])
        elif op.startswith('ds_read'):
            self.kind = 'ds'; self.wr = set(R[0]); self.rd = set(R[1])
        elif op.startswith('ds_write'):
            self.kind = 'ds'; self.rd = set(sum(R, []))
        elif op.startswith('ds_bpermute') or op.startswith('ds_swizzle'):
            self.kind = 'ds'; self.wr = set(R[0]); self.rd = set(sum(R[1:], []))
        elif op.startswith('buffer_load') or op.startswith('global_load'):
            self.kind = 'vmem'
            if 'lds' in self.mods or '_lds_' in op:
                self.rd = set(sum(R, [])) | {'m0'}
            else:
                self.wr = set(R[0]); self.rd = set(sum(R[1:], []))
        elif op.startswith('buffer_store') or op.startswith('global_store'):
            self.kind = 'vmem'; self.rd = set(sum(R, []))
            self.sdata = R[0] if op.startswith('buffer') else R[1]
        elif op == 's_waitcnt':
            self.kind = 'wait'
            m = re.search(r'vmcnt\((\d+)\)', t); self.vm = int(m.group(1)) if m else None
            m = re.search(r'lgkmcnt\((\d+)\)', t); self.lgkm = int(m.group(1)) if m else None
        elif op == 's_nop':
            self.kind = 'nop'; self.n = int(ops[0]) + 1
        elif op.startswith('s_load') or op in ('s_memtime', 's_memrealtime'):
            self.kind = 'smem'; self.wr = set(R[0]); self.rd = set(sum(R[1:], []))
        elif op.startswith('s_cmp') or op.startswith('s_bitcmp'):
            self.kind = 'salu'; self.rd = set(sum(R, []))
        elif op.startswith('s_cbranch') or op in ('s_branch', 's_barrier', 's_endpgm', 's_setprio'):
            self.kind = 'ctl'
        elif op.startswith('s_'):
            self.kind = 'salu'; self.wr = set(R[0]); self.rd = set(sum(R[1:], []))
            if op.startswith('s_addk') or op.startswith('s_bitset'):
                self.rd |= set(R[0])
        else:
            raise ValueError("unknown instruction " + text)

def check(trace, name=""):
    probs = []
    pos = 0
    lastw = {}
    lastc = {}
    laststore = {}
    ds_out, vm_out = [], []
    smem_out = []
    sccw = None
    for ins in trace:
        k = ins.kind
        if k == 'pseudo':
            continue
        if ins.op in ('s_addc_u32', 's_subb_u32'):
            d = int(next(iter(ins.wr))[1:])
            if sccw is None or sccw.wr != {f"s{d-1}"}:
                probs.append(f"{name}: carry for '{ins.text}' comes from '{sccw.text if sccw else None}'")
        if ins.op.startswith('s_cselect') or ins.op.startswith('s_cbranch_scc'):
            if sccw is None or not (sccw.op.startswith('s_cmp') or sccw.op.startswith('s_bitcmp')):
                probs.append(f"{name}: SCC for '{ins.text}' comes from '{sccw.text if sccw else None}'")
        if k == 'salu' and not any(ins.op.startswith(x) for x in ('s_mov', 's_mul', 's_cselect', 's_getpc', 's_getreg')):
            sccw = ins
        def need(r, n, why, tab=lastw):
            p = tab.get(r)
            if p is not None and pos - p[0] - 1 < n:
                probs.append(f"{name}: {why}: '{p[1].text}' -> '{ins.text}' has {pos - p[0] - 1} < {n}")
        touched = ins.rd | ins.wr
        for q, nm in ((ds_out, 'lgkm'), (vm_out, 'vm'), (smem_out, 'smem')):
            for o in q:
                if o.wr & touched:
                    probs.append(f"{name}: unwaited {nm} result: '{o.text}' -> '{ins.text}'")
        for r in ins.rd:
            p = lastw.get(r)
            if not p:
                continue
            w = p[1]
            if w.kind == 'mfma':
                big = 12 if ('smfmac' in w.op or '32x32' in w.op) else 8
                if k == 'mfma':
                    if r in ins.ab:
                        need(r, big, "mfma D -> mfma A/B")
                    elif ins.srcc != w.dst or ins.op != w.op:
                        need(r, big - 2, "mfma D -> mfma C overlap")
                elif k in ('valu', 'trans', 'ds', 'vmem'):
                    need(r, big, "mfma D -> read")
            elif w.kind in ('valu', 'trans'):
                if r[0] in 'va' and r != 'vcc':
                    if k == 'mfma':
                        need(r, 2, "valu -> mfma")
                    if ins.op.startswith('v_permlane') or 'dpp' in ins.op:
                        need(r, 2, "valu -> permlane/dpp")
                    if ins.op.startswith('v_readfirstlane') or ins.op.startswith('v_readlane'):
                        need(r, 1, "valu -> readlane")
                    if w.kind == 'trans' and k == 'valu':
                        need(r, 1, "trans -> valu")
                else:
                    if k == 'vmem':
                        need(r, 5, "valu sgpr -> vmem")
                    if k in ('valu', 'trans'):
                        need(r, 2, "valu sgpr -> valu")
                    if k == 'salu':
                        need(r, 1, "valu sgpr -> salu")
            elif w.kind == 'salu' and r == 'm0' and k == 'vmem':
                need(r, 1, "m0 -> lds dma")
        for r in ins.wr:
            p = lastw.get(r)
            if p and p[1].kind == 'mfma':
                big = 12 if ('smfmac' in p[1].op or '32x32' in p[1].op) else 8
                if k in ('valu', 'trans', 'ds', 'vmem'):
                    need(r, big, "mfma D -> WAW")
                elif k == 'mfma' and ins.srcc != p[1].dst:
                    need(r, big - 2, "mfma D -> mfma WAW")
            if k in ('valu', 'trans'):
                need(r, 7, "mfma C read -> valu WAR", lastc)
                need(r, 2, "store data WAR", laststore)
            elif k in ('ds', 'vmem', 'mfma'):
                need(r, 1, "store data WAR", laststore)
        if k == 'wait':
            if ins.vm is not None:
                while len(vm_out) > ins.vm:
                    vm_out.pop(0)
            if ins.lgkm is not None:
                if smem_out and ins.lgkm != 0:
                    probs.append(f"{name}: counted lgkmcnt with SMEM outstanding: {ins.text}")
                if ins.lgkm == 0:
                    smem_out = []
                while len(ds_out) > ins.lgkm:
                    ds_out.pop(0)
        if k == 'ds':
            ds_out.append(ins)
        if k == 'vmem':
            vm_out.append(ins)
            if len(vm_out) > 63:
                probs.append(f"{name}: more than 63 vmem outstanding at {ins.text}")
            if hasattr(ins, 'sdata'):
                for r in ins.sdata:
                    laststore[r] = (pos, ins)
        if k == 'smem':
            smem_out.append(ins)
        for r in ins.wr:
            lastw[r] = (pos, ins)
        if k == 'mfma':
            for r in ins.srcc:
                lastc[r] = (pos, ins)
        pos += ins.n if k == 'nop' else 1
    return probs


def resolve_waits(trace):
    res = {}
    vm, ds = [], []
    for ins in trace:
        if ins.kind == 'vmem':
            vm.append(getattr(ins, 'tag', None))
        elif ins.kind == 'ds':
            ds.append(getattr(ins, 'tag', None))
        elif ins.kind == 'wait' and hasattr(ins, 'key'):
            def cnt(q, tags, cap):
                if tags is None:
                    return None
                if tags == 'all':
                    return 0
                last = max((i for i, t in enumerate(q) if t in tags), default=None)
                if last is None:
                    return None
                return min(cap, len(q) - 1 - last)
            a, b = cnt(vm, ins.need_vm, 63), cnt(ds, ins.need_ds, 15)
            pa, pb = res.get(ins.key, (None, None))
            mn = lambda x, y: y if x is None else (x if y is None else min(x, y))
            res[ins.key] = (mn(pa, a), mn(pb, b))
    return res

def apply_waits(seq, res):
    for ins in seq:
        if ins.kind == 'wait' and hasattr(ins, 'key'):
            a, b = res[ins.key]
            ins.vm, ins.lgkm = a, b
            parts = ([f"vmcnt({a})"] if a is not None else []) + ([f"lgkmcnt({b})"] if b is not None else [])
            ins.text = "s_waitcnt " + " ".join(parts) if parts else "s_nop 0"

def check_ring(trace):
    probs = []
    vm_out, ds_out = [], []
    landed, visible = set(), set()
    issued = {}
    pending_reads = {}
    reads_since_bar = set()
    holder = {}
    for ins in trace:
        if ins.kind == 'vmem':
            vm_out.append(ins)
            f = getattr(ins, 'fill', None)
            if f:
                slot = (f[0], f[2])
                old = holder.get(slot)
                if old is not None and old != f[1] and (f[0], old) in reads_since_bar:
                    probs.append(f"DMA {f} overwrites {old} with reads not fenced by a barrier")
                holder[slot] = f[1]
        elif ins.kind == 'ds':
            ds_out.append(ins)
            u = getattr(ins, 'use', None)
            if u:
                if (u[0], u[1]) not in visible:
                    probs.append(f"read of {u} before it is visible: {ins.text}")
                if holder.get((u[0], u[2])) != u[1]:
                    probs.append(f"read of {u} but slot holds {holder.get((u[0], u[2]))}")
                reads_since_bar.add((u[0], u[1]))
        elif ins.kind == 'wait':
            if ins.vm is not None:
                while len(vm_out) > ins.vm:
                    o = vm_out.pop(0)
                    f = getattr(o, 'fill', None)
                    if f:
                        issued[(f[0], f[1])] = issued.get((f[0], f[1]), 0) + 1
                        if issued[(f[0], f[1])] == f[3]:
                            landed.add((f[0], f[1]))
            if ins.lgkm is not None:
                while len(ds_out) > ins.lgkm:
                    ds_out.pop(0)
        elif ins.op == 's_barrier':
            visible |= landed
            reads_since_bar = {(o.use[0], o.use[1]) for o in ds_out if hasattr(o, 'use')}
    return probs
```

```python
import sys, struct, math
from asmlib import Ins, check, resolve_waits, apply_waits, check_ring

KN = "standalone__mha_softmax__near_ridge_kernel"
NT = 5
OPT = dict(stamps=0, early=0, probe=-1, pa=0, pb=0, kvpol=0, qpol=1, opol=4, oapol=0)
POL = ['', ' nt', ' sc1', ' sc1 nt', ' sc0 sc1', ' sc0 sc1 nt', ' sc0', ' sc0 nt']

def O(t, db): return 32 * t + 4 * db
S0, P0, NM0, VKA, VVA = 160, 176, 192, 212, 216
VDK, VDV, VIDX, VQG, VSL, VOS, VQR = 224, 225, 226, 227, 228, 229, 230
VX, VT, VST = 232, 244, 252
def S(n): return S0 + 8 * (n & 1)
def P(n): return P0 + 4 * (n & 3)
def NM(t): return NM0 + 4 * t
def AQ(t, ks): return 16 * t + 4 * ks
def AK(par, j, ks): return 80 + 32 * par + 16 * j + 4 * ks
def AV(par, db): return 144 + 32 * par + 4 * db
AONE = 208
def AL(k): return 212 + 4 * k
SK, SV, SQ, SO = 12, 16, 20, 24
sOff, sWL, sCnt, sCh, sC, sFlag, sW, sHalf, sHead, sMask, sStage = 28, 29, 30, 31, 32, 34, 35, 36, 37, 38, 39
sT = 40
sTmp = 46
sStamp = 56
VBASE = 32768
STAGE, STW = 65536, 21504
STAMPS = 0x26000
HEADQ, HEADK = 624 * 256, 1024 * 256
THR = 2.0 ** 30

def vr(b, n=4): return f"v[{b}:{b+n-1}]"
def ar(b, n=4): return f"a[{b}:{b+n-1}]"
def sr(b, n=4): return f"s[{b}:{b+n-1}]"
def f32(x): return "0x%08x" % struct.unpack("<I", struct.pack("<f", x))[0]

def I(text, **kw):
    i = Ins(text)
    for k, v in kw.items():
        setattr(i, k, v)
    return i

def W(key, vm=None, ds=None):
    return I("s_waitcnt vmcnt(0)", key=key, need_vm=vm, need_ds=ds)

class Seg(list):
    def e(self, *lines):
        for l in lines:
            if isinstance(l, Ins):
                self.append(l)
            elif l:
                self.append(Ins(l))

def cost(i):
    if i.kind in ('trans', 'vmem'):
        return 8
    if i.kind == 'ds':
        return 8 if i.op.startswith('ds_write') else 4
    return 4

class Gap:
    def __init__(self, mf):
        self.mf = mf if isinstance(mf, Ins) else Ins(mf)
        self.sc, self.mem, self.val = [], [], []
        self.block = 0
    def used(self):
        return self.block + sum(map(cost, self.mem + self.val)) + 4 * max(0, len(self.sc) - 1)
    def put(self, i):
        i = i if isinstance(i, Ins) else Ins(i)
        (self.val if i.kind in ('valu', 'trans') else self.mem if i.kind in ('ds', 'vmem') else self.sc).append(i)
    def out(self):
        return [self.mf] + self.sc + self.mem + self.val

def rank(i):
    return 2 if i.kind in ('valu', 'trans') else 1 if i.kind in ('ds', 'vmem') else 0

def fill(gaps, ops):
    ops = [o if isinstance(o, (Ins, int)) else Ins(o) for o in ops]
    glue = lambda o: o.op in ('s_addc_u32', 's_cselect_b32')
    for cap in range(8, 400, 4):
        plan, g, last, extra, nsc = [], 0, -1, {}, {}
        ok = True
        for o in ops:
            if isinstance(o, int):
                g += o; last = -1
                continue
            r = rank(o)
            if r < last:
                g += 1
            while g < len(gaps):
                u = gaps[g].used() + extra.get(g, 0)
                if r == 0:
                    c = 0 if (len(gaps[g].sc) + nsc.get(g, 0)) == 0 else 4
                    if c == 0 or u + c <= cap or glue(o):
                        break
                else:
                    c = cost(o)
                    if u + c <= cap:
                        break
                g += 1
            if g >= len(gaps):
                ok = False
                break
            extra[g] = extra.get(g, 0) + c
            if r == 0:
                nsc[g] = nsc.get(g, 0) + 1
            plan.append((g, o)); last = r
        if ok:
            for g, o in plan:
                gaps[g].put(o)
            return cap
    raise RuntimeError("cannot fill")

def flat(gaps):
    s = Seg()
    for g in gaps:
        s.extend(g.out())
    return s

def stamp(s):
    if OPT['stamps']:
        s.e(f"s_memrealtime s[{sTmp}:{sTmp+1}]", f"s_memtime s[{sTmp+2}:{sTmp+3}]", "s_waitcnt lgkmcnt(0)",
            f"v_mov_b32 v{VST}, s{sTmp}", f"v_mov_b32 v{VST+1}, s{sTmp+2}",
            f"ds_write_b64 v{VST+2}, {vr(VST, 2)}", f"v_add_u32 v{VST+2}, 8, v{VST+2}", "s_waitcnt lgkmcnt(0)")

def frag_reads(gb):
    par, slot = gb & 1, gb & 3
    r = []
    for j in range(2):
        for ks in range(4):
            r.append(I(f"ds_read_b128 {ar(AK(par, j, ks))}, v{VKA+ks} offset:{slot*8192 + j*4096}",
                       tag=('K', gb), use=('K', gb, slot)))
    for db in range(8):
        for u in range(2):
            r.append(I(f"ds_read_b64_tr_b16 {ar(AV(par, db) + 2*u, 2)}, v{VVA+db} offset:{VBASE + slot*8192 + u*4096}",
                       tag=('V', gb), use=('V', gb, slot)))
    return r

def dma(gb, part):
    i, isv, slot = part >> 1, part & 1, gb & 3
    m0 = I(f"s_add_u32 m0, s{sWL}, {isv*VBASE + slot*8192 + i*4096}")
    ld = I(f"buffer_load_dwordx4 v{VDV if isv else VDK}, {sr(SV if isv else SK)}, s{sOff} offen{POL[OPT['kvpol']]} lds",
           tag=('D', gb), fill=('V' if isv else 'K', gb, slot, 2))
    adv = I(f"s_add_u32 s{sOff}, s{sOff}, 4096") if isv else None
    return m0, ld, adv

def qk(n):
    t, b = n % 5, n // 5
    r = []
    for j in range(2):
        d = S(n) + 4 * j
        for ks in range(4):
            c = vr(NM(t)) if ks == 0 else vr(d)
            r.append(f"v_mfma_f32_16x16x32_bf16 {vr(d)}, {ar(AK(b & 1, j, ks))}, {ar(AQ(t, ks))}, {c}")
    return r

def pv(n):
    t, b = n % 5, n // 5
    return [f"v_mfma_f32_16x16x32_bf16 {vr(O(t, db))}, {ar(AV(b & 1, db))}, {vr(P(n))}, {'0' if b == 0 else vr(O(t, db))}"
            for db in range(8)]

def smf(n):
    return f"v_smfmac_f32_16x16x64_bf16 {ar(AL(((n - 2) // 2) % 5))}, {ar(AONE)}, {vr(P(n - 2), 8)}, v{VIDX}"

def step(p, n, key):
    a = qk(n + 1) if n + 1 <= 159 else []
    c = pv(n - 1) if n >= 1 else []
    ex = [f"v_exp_f32 v{S(n)+k}, v{S(n)+k}" for k in range(8)] if 0 <= n <= 159 else []
    cv = [f"v_cvt_pk_bf16_f32 v{P(n)+k}, v{S(n)+2*k}, v{S(n)+2*k+1}" for k in range(4)] if ex else []
    wb, wi = (n - 1) // 5, (n - 1) % 5
    gb = 32 * p + wb
    rd = frag_reads(gb + 1)[5 * wi:5 * wi + 5] if (n >= 1 and gb + 1 <= 63) else []
    dm = dma(gb + 4, wi) if (n >= 1 and wi < 4 and (gb + 4 <= 63 or key[0] == 'loop')) else None
    bar = n >= 1 and wi == 0
    G = [Gap(m) for m in a + c]
    full = len(G) == 16
    if full:
        for k in range(8):
            G[2 * k].put(ex[k])
        for k in range(4):
            G[4 * k + 3].put(cv[k])
        rg = [3, 7, 9, 11, 13] if bar else [1, 3, 7, 9, 11]
        for g, r in zip(rg, rd):
            G[g].put(r)
        if dm:
            G[2].put(dm[0]); G[5].put(dm[1])
            if dm[2]:
                G[7].put(dm[2])
        if bar:
            G[0].put(W(key + ('bar',), vm={('D', gb + 1)}, ds={('K', gb), ('V', gb)}))
            if gb + 1 <= 63:
                G[1].put("s_barrier"); G[1].block = 8
        if wi == 2 and rd:
            G[15].put(W(key + ('k',), ds={('K', gb + 1)}))
        if n >= 2 and n % 2 == 0:
            G.insert(8, Gap(smf(n)))
        return G
    if n == -1:
        G[7].put("s_nop 3")
    elif n == 0 or n == 159:
        for g in range(8):
            if g >= 2 and g % 2 == 0:
                G[g].put(cv[g // 2 - 1])
            G[g].put(ex[g])
        for g, r in enumerate(rd):
            G[g].put(r)
        if dm:
            G[0].put(dm[0]); G[6].put(dm[1])
            if dm[2]:
                G[7].put(dm[2])
        G[7].val += [Ins("s_nop 0"), Ins(cv[3])]
        if n == 159:
            G[7].val.append(Ins("s_nop 1"))
    elif n == 160:
        G.insert(0, Gap(smf(n)))
        for g, r in enumerate(rd):
            G[g].put(r)
    return G

def scale_ops(x, t, packed):
    r = []
    if packed:
        for k in range(4):
            r += [f"v_lshlrev_b32 v{t+2*k}, 16, v{x+k}", f"v_and_b32 v{t+2*k+1}, s{sMask}, v{x+k}"]
        r += [f"v_pk_mul_f32 {vr(t+2*k, 2)}, {vr(t+2*k, 2)}, {sr(sC, 2)}" for k in range(4)]
        r += [f"v_cvt_pk_bf16_f32 v{x+k}, v{t+2*k}, v{t+2*k+1}" for k in range(4)]
        return r
    for h in range(2):
        for k in range(2):
            r += [f"v_lshlrev_b32 v{t+2*k}, 16, v{x+2*h+k}", f"v_and_b32 v{t+2*k+1}, s{sMask}, v{x+2*h+k}"]
        r += [f"v_mul_f32 v{t+k}, s{sC}, v{t+k}" for k in range(4)]
        r += [f"v_cvt_pk_bf16_f32 v{x+2*h+k}, v{t+2*k}, v{t+2*k+1}" for k in range(2)]
    return r

def qb_load(i, c):
    return [I(f"buffer_load_dwordx4 {vr(VX+4*c)}, v{VQG}, {sr(SQ)}, s{sCh} offen{POL[OPT['qpol']]}", tag=('QB', i)),
            f"s_add_u32 s{sCh}, s{sCh}, 1024"]

def q_frag_reads(t, adr):
    return [I(f"ds_read_b128 {ar(AQ(t, ks))}, v{adr[ks]} offset:{4096*t}", tag=('Q', t)) for ks in range(4)]

def srd_rows(srd, ptr, p):
    a, b, c = sTmp, sTmp + 1, sTmp + 2
    return [f"s_xor_b32 s{b}, s{sHalf}, {p}", f"s_mul_i32 s{b}, s{b}, {320*256}",
            f"s_mul_i32 s{c}, s{sW}, {80*256}", f"s_add_u32 s{b}, s{b}, s{c}",
            f"s_add_u32 s{a}, s{sHead}, {p}", f"s_mul_i32 s{a}, s{a}, {HEADQ}", f"s_add_u32 s{a}, s{a}, s{b}",
            f"s_add_u32 s{srd}, s{ptr}, s{a}", f"s_addc_u32 s{srd+1}, s{ptr+1}, 0",
            f"s_sub_u32 s{b}, {HEADQ}, s{b}", f"s_min_u32 s{srd+2}, s{b}, {80*256}", f"s_mov_b32 s{srd+3}, 0x20000"]

def mref_mfma(t):
    return [f"v_mfma_f32_16x16x32_bf16 {vr(NM(t))}, {ar(AK(0, 0, ks))}, {ar(AQ(t, ks))}, {'0' if ks == 0 else vr(NM(t))}"
            for ks in range(4)]

def mref_valu(ts):
    r = []
    pad = ["s_nop 1"] if len(ts) < 3 else []
    r += [f"v_max3_f32 v{NM(t)}, v{NM(t)}, v{NM(t)+1}, v{NM(t)+2}" for t in ts]
    r += [f"v_max_f32 v{NM(t)}, v{NM(t)}, v{NM(t)+3}" for t in ts]
    for sw in ("v_permlane16_swap_b32", "v_permlane32_swap_b32"):
        r += [f"v_mov_b32 v{NM(t)+1}, v{NM(t)}" for t in ts] + pad
        r += [f"{sw} v{NM(t)}, v{NM(t)+1}" for t in ts]
        r += [f"v_max_f32 v{NM(t)}, v{NM(t)}, v{NM(t)+1}" for t in ts]
    for t in ts:
        r += [f"v_sub_f32 v{NM(t)+k}, 0, v{NM(t)}" for k in (3, 2, 1, 0)]
    return r

def prologue():
    s = Seg()
    T = VT
    if OPT['early']:
        s.e("s_memrealtime s[64:65]")
    s.e("s_load_dwordx4 s[4:7], s[0:1], 0", "s_load_dwordx4 s[8:11], s[0:1], 16")
    if OPT['stamps']:
        s.e(f"s_load_dwordx2 s[{sStamp}:{sStamp+1}], s[0:1], 40")
    s.e("s_cmp_ge_u32 s2, 256", "s_cbranch_scc1 L_end")
    Wv, L, Q16, G, R, X, Y = T, T + 1, T + 2, T + 3, T + 4, T + 5, T + 6
    s.e(f"v_lshrrev_b32 v{Wv}, 6, v0", f"v_and_b32 v{L}, 63, v0", f"v_lshlrev_b32 v{X}, 7, v0",
        f"v_readfirstlane_b32 s{sW}, v{Wv}", f"s_getpc_b64 s[{sTmp}:{sTmp+1}]",
        f"v_min_u32 v{X}, L_code_end-{KN}-128, v{X}",
        I(f"global_load_dword v{VX}, v{X}, s[{sTmp}:{sTmp+1}]", tag='pf'))
    s.e(f"s_and_b32 s{sHead}, s2, 7", f"s_lshl_b32 s{sHead}, s{sHead}, 5",
        f"s_lshr_b32 s3, s2, 3", f"s_and_b32 s{sHalf}, s3, 1", f"s_and_b32 s3, s3, 30",
        f"s_add_u32 s{sHead}, s{sHead}, s3", f"s_lshl_b32 s{sWL}, s{sW}, 10")
    s.e(f"v_and_b32 v{Q16}, 15, v{L}", f"v_lshrrev_b32 v{G}, 4, v{L}",
        f"v_lshl_add_u32 v{R}, v{Wv}, 2, v{G}",
        f"v_xor_b32 v{X}, v{Q16}, v{R}", f"v_lshlrev_b32 v{X}, 4, v{X}", f"v_lshl_add_u32 v{VDK}, v{R}, 8, v{X}",
        f"v_lshlrev_b32 v{X}, 2, v{G}", f"v_xor_b32 v{X}, v{Q16}, v{X}", f"v_lshlrev_b32 v{X}, 4, v{X}",
        f"v_lshl_add_u32 v{VQG}, v{G}, 8, v{X}",
        f"v_and_b32 v{X}, 7, v{R}", f"v_lshlrev_b32 v{X}, 1, v{X}", f"v_xor_b32 v{X}, v{Q16}, v{X}",
        f"v_lshlrev_b32 v{X}, 4, v{X}", f"v_lshl_add_u32 v{VDV}, v{R}, 8, v{X}")
    s.e(f"s_mul_i32 s3, s{sHead}, {HEADK}", f"s_mov_b32 s{SK+2}, {2*HEADK}", f"s_mov_b32 s{SK+3}, 0x20000",
        f"s_mov_b32 s{SV+2}, {2*HEADK}", f"s_mov_b32 s{SV+3}, 0x20000", f"s_mov_b32 s{sOff}, 0")
    for t in range(NT):
        s.e(f"s_mov_b32 s{sT+t}, {4096*t}")
    rows = srd_rows(SQ, 4, 0)
    s.e(*rows[:7])
    if OPT['stamps']:
        s.e(f"v_lshlrev_b32 v{VST+2}, 8, v{Wv}", f"v_add_u32 v{VST+2}, {STAMPS}, v{VST+2}")
    s.e("s_waitcnt lgkmcnt(0)")
    s.e(f"s_add_u32 s{SK}, s6, s3", f"s_addc_u32 s{SK+1}, s7, 0", *rows[7:],
        f"s_add_u32 s{SV}, s8, s3", f"s_addc_u32 s{SV+1}, s9, 0")
    stamp(s)
    def blk(gb):
        for p in range(4):
            m0, ld, adv = dma(gb, p)
            s.e(m0, "s_nop 0", ld, adv)
    def qload(t):
        for c in range(4):
            s.e(I(f"buffer_load_dwordx4 {vr(80 + 16*t + 4*c)}, v{VQG}, {sr(SQ)}, s{sT+t} offen offset:{1024*c}{POL[OPT['qpol']]}",
                  tag=('QA', t)))
    adr = [VQR, VX + 1, VX + 2, VX + 3]
    def qprep(t):
        s.e(W(('pro', 'q', t), vm={('QA', t)}))
        if t == 0:
            stamp(s)
        for c in range(4):
            s.e(*scale_ops(80 + 16 * t + 4 * c, VX + 4, True))
        for c in range(4):
            s.e(f"ds_write_b128 v{VSL}, {vr(80 + 16*t + 4*c)} offset:{4096*t + 1024*c}")
        s.e(*q_frag_reads(t, adr))
    def mref(t):
        s.e(W(('pro', 'm', t), ds={('Q', t), ('K', 0)}), *mref_mfma(t), "s_nop 7", *mref_valu([t]), "s_nop 1")
    qload(0); blk(0); qload(1)
    s.e(f"s_mov_b32 s{sFlag}, 0", f"s_mov_b32 s{sMask}, 0xffff0000",
        f"s_mov_b32 s{sC}, {f32(math.log2(math.e) / math.sqrt(128.0))}", f"s_mov_b32 s{sC+1}, s{sC}",
        f"s_mul_i32 s{sStage}, s{sW}, {STW}", f"s_add_u32 s{sStage}, s{sStage}, {STAGE}")
    for ks in range(4):
        s.e(f"v_add_u32 v{X}, {4*ks}, v{G}", f"v_xor_b32 v{X}, v{X}, v{Q16}", f"v_lshlrev_b32 v{X}, 4, v{X}",
            f"v_lshl_add_u32 v{VKA+ks}, v{Q16}, 8, v{X}")
    s.e(f"v_lshrrev_b32 v{X}, 2, v{L}", f"v_and_b32 v{Y}, 3, v{L}", f"v_lshlrev_b32 v{Y}, 3, v{Y}",
        f"v_lshl_add_u32 v{Y}, v{X}, 8, v{Y}", f"v_and_b32 v{X}, 7, v{X}")
    for db in range(8):
        s.e(f"v_xor_b32 v{R}, {db}, v{X}", f"v_lshl_add_u32 v{VVA+db}, v{R}, 5, v{Y}")
    s.e(f"v_lshlrev_b32 v{X}, 4, v{G}", f"v_lshl_add_u32 v{VOS}, v{Q16}, 8, v{X}",
        f"v_lshl_add_u32 v{VSL}, v{L}, 4, s{sStage}",
        f"v_and_b32 v{X}, 3, v{L}", f"v_lshl_add_u32 v{X}, v{X}, 6, v{VOS}", f"v_add_u32 v{VQR}, s{sStage}, v{X}")
    s.e(f"v_and_b32 v{X}, 1, v{L}", f"v_mul_u32_u24 v{X}, 0xaaaa, v{X}", f"v_add_u32 v{VIDX}, 0x4444, v{X}",
        f"v_lshrrev_b32 v{X}, 1, v{L}", f"v_lshrrev_b32 v{Y}, 5, v{L}", f"v_xor_b32 v{X}, v{X}, v{Y}",
        f"v_and_b32 v{X}, 1, v{X}", f"v_add_u32 v{X}, -1, v{X}", f"v_and_b32 v{X}, 0x3f803f80, v{X}")
    for r in range(4):
        s.e(f"v_accvgpr_write_b32 a{AONE+r}, v{X}")
    for k in range(20):
        s.e(f"v_accvgpr_write_b32 a{AL(0)+k}, 0")
    for ks in range(1, 4):
        s.e(f"v_xor_b32 v{adr[ks]}, {64*ks}, v{VQR}")
    qprep(0)
    qload(2)
    s.e(W(('pro', 'b0'), vm={('D', 0)}), "s_barrier", *frag_reads(0))
    blk(1)
    mref(0)
    s.extend(flat(step(0, -1, ('peelA', -1))))
    qprep(1); qload(3); mref(1)
    s.extend(flat(step(0, 0, ('peelA', 0))))
    qprep(2); qload(4); blk(2); blk(3); mref(2)
    s.extend(flat(step(0, 1, ('peelA', 1))))
    qprep(3); mref(3)
    s.extend(flat(step(0, 2, ('peelA', 2))))
    qprep(4); mref(4)
    stamp(s)
    G = []
    for n in range(3, 15):
        G += step(0, n, ('peelA', n))
    k = len(G)
    fill(G, srd_rows(SQ, 4, 1) + [f"s_mov_b32 s{sCh}, 0", f"s_mov_b32 s{sCnt}, 7", 4] +
         qb_load(0, 0) + [20] + qb_load(1, 1) + [20] + qb_load(2, 2))
    s.extend(flat(G))
    return s

def loop_end(G):
    G[-4].put(f"s_sub_u32 s{sCnt}, s{sCnt}, 1")
    G[-2].put(f"s_cmp_lg_u32 s{sCnt}, 0")
    assert not any(i.kind == 'salu' for i in G[-1].sc + G[-2].sc[:-1])

def body_a(trip):
    n0 = 15 + 20 * trip
    st = [step(0, n0 + k, ('loop', 'A', k)) for k in range(20)]
    loop_end(st[19])
    for c, (a, b) in enumerate(((0, 6), (6, 13), (13, 19))):
        i = 3 * trip + c
        ops = [W(('loop', 'A', 'q', c), vm={('QB', i)})] + scale_ops(VX + 4 * c, VT, False)
        ops += [f"ds_write_b128 v{VSL}, {vr(VX+4*c)} offset:{1024*c}", 2] + qb_load(i + 3, c)
        if c == 2:
            ops += [f"v_add_u32 v{VSL}, 3072, v{VSL}"]
        cap = fill(sum(st[a:b], []), ops)
        assert cap == 8, cap
    s = flat(sum(st, []))
    s.e("s_cbranch_scc1 L_loopA")
    return s

def l_ops(T, Lr, bit):
    r = [f"v_accvgpr_read_b32 v{T+k}, a{AL(0)+k}" for k in range(20)]
    r += [f"v_add_f32 v{T+2*k}, v{T+2*k}, v{T+2*k+1}" for k in range(10)]
    r += [f"v_add_f32 v{Lr+2*t}, v{T+2*t}, v{T+2*(t+5)}" for t in range(NT)]
    r += [f"v_add_f32 v{T}, v{Lr}, v{Lr+2}", f"v_add_f32 v{T+1}, v{Lr+4}, v{Lr+6}",
          f"v_add_f32 v{T}, v{T}, v{Lr+8}", f"v_add_f32 v{T}, v{T}, v{T+1}",
          f"v_cmp_ngt_f32 vcc, {f32(THR)}, v{T}"]
    r += [f"v_rcp_f32 v{Lr+2*t}, v{Lr+2*t}" for t in range(NT)]
    r += ["s_cmp_lg_u64 vcc, 0", f"s_cselect_b32 s{sTmp}, {bit}, 0", f"s_or_b32 s{sFlag}, s{sFlag}, s{sTmp}"]
    return r

def boundary():
    s = Seg()
    adr = [VQR, VT + 1, VT + 2, VT + 3]
    VOW = VT + 4
    st = {n: step(0, n, ('tailA', n)) for n in range(155, 161)}
    fill(st[155], [f"v_xor_b32 v{adr[ks]}, {64*ks}, v{VQR}" for ks in range(1, 4)] + q_frag_reads(0, adr))
    for t in range(1, 5):
        fill(st[155 + t], q_frag_reads(t, adr))
    fill(st[156] + st[157] + st[158], srd_rows(SO, 10, 0) + [
        f"v_add_u32 v{VSL}, {-7*3072}, v{VSL}",
        f"v_and_b32 v{VOW}, 16, v{VOS}", f"v_lshrrev_b32 v{VOW}, 1, v{VOW}",
        f"v_and_b32 v{VOW+1}, 32, v{VOS}", f"v_lshl_add_u32 v{VOW}, v{VOW+1}, 3, v{VOW}",
        f"v_lshrrev_b32 v{VOW+1}, 8, v{VOS}", f"v_lshl_add_u32 v{VOW}, v{VOW+1}, 4, v{VOW}",
        f"v_add_u32 v{VOW}, s{sStage}, v{VOW}"])
    st[158][-1].val.append(Ins("s_nop 1"))
    for n in range(155, 161):
        s.extend(flat(st[n]))
    stamp(s)
    T, Lr = S0, S0 + 20
    s.e(W(('bnd', 'q'), ds={('Q', 4), ('K', 32)}))
    G = [Gap(m) for t in range(NT) for m in mref_mfma(t)]
    fill(G[3:], l_ops(T, Lr, 1) + [f"v_accvgpr_write_b32 a{AL(0)+k}, 0" for k in range(20)])
    s.extend(flat(G))
    for t in range(NT):
        for db in range(8):
            b = O(t, db)
            s.e(*[f"v_pk_mul_f32 {vr(b+2*k, 2)}, {vr(b+2*k, 2)}, {vr(Lr+2*t, 2)} op_sel_hi:[1,0]" for k in range(2)])
        for db in range(8):
            b = O(t, db)
            s.e(*[f"v_cvt_pk_bf16_f32 v{b+k}, v{b+2*k}, v{b+2*k+1}" for k in range(2)])
        for u in range(4):
            s.e(f"ds_write2st64_b64 v{VOW}, {vr(O(t, 2*u), 2)}, {vr(O(t, 2*u+1), 2)} offset0:{8*t+2*u} offset1:{8*t+2*u+1}")
        if t == 0:
            s.e(*mref_valu(range(NT)))
    stamp(s)
    G = []
    for n in range(-1, 9):
        G += step(1, n, ('peelB', n))
    fill(G[40:], [f"s_mov_b32 s{sCh}, 0", f"s_mov_b32 s{sCnt}, 7"])
    s.extend(flat(G))
    return s

def body_b(trip):
    n0 = 9 + 20 * trip
    st = [step(1, n0 + k, ('loop', 'B', k)) for k in range(20)]
    loop_end(st[19])
    for c, (a, b) in enumerate(((0, 6), (6, 13), (13, 19))):
        i = 3 * trip + c
        ops = [I(f"ds_read_b128 {vr(VX)}, v{VSL} offset:{1024*c}", tag=('OA', i)), 16,
               W(('loop', 'B', 'o', c), ds={('OA', i)}),
               f"buffer_store_dwordx4 {vr(VX)}, v{VOS}, {sr(SO)}, s{sCh} offen{POL[OPT['oapol']]}", 2,
               f"s_add_u32 s{sCh}, s{sCh}, 64", f"s_and_b32 s{sTmp}, s{sCh}, 256", f"s_mul_i32 s{sTmp}, s{sTmp}, 15",
               f"s_add_u32 s{sCh}, s{sCh}, s{sTmp}"]
        if c == 2:
            ops += [f"v_add_u32 v{VSL}, 3072, v{VSL}"]
        cap = fill(sum(st[a:b], []), ops)
        assert cap == 8, cap
    s = flat(sum(st, []))
    s.e("s_cbranch_scc1 L_loopB")
    return s

def finale():
    s = Seg()
    VOO = VT + 4
    st = {n: step(1, n, ('tailB', n)) for n in range(149, 161)}
    fill(st[152] + st[153] + st[154], srd_rows(SO, 10, 1) + [
        f"v_and_b32 v{VOO}, 16, v{VOS}", f"v_and_b32 v{VOO+1}, 32, v{VOS}", f"v_lshrrev_b32 v{VOO+1}, 1, v{VOO+1}",
        f"v_lshl_add_u32 v{VOO}, v{VOO}, 1, v{VOO+1}", f"v_and_b32 v{VOO+1}, 0xf00, v{VOS}",
        f"v_add_u32 v{VOO}, v{VOO}, v{VOO+1}"])
    st[158][-1].val.append(Ins("s_nop 1"))
    for n in range(149, 161):
        s.extend(flat(st[n]))
    stamp(s)
    T, Lr = S0, S0 + 20
    s.e("s_nop 3", *l_ops(T, Lr, 2))
    for t in range(NT):
        for u in range(4):
            b = O(t, 2 * u)
            s.e(*[f"v_pk_mul_f32 {vr(b+2*k, 2)}, {vr(b+2*k, 2)}, {vr(Lr+2*t, 2)} op_sel_hi:[1,0]" for k in range(4)])
            s.e(*[f"v_cvt_pk_bf16_f32 v{b+k}, v{b+2*k}, v{b+2*k+1}" for k in range(4)])
        s.e("s_nop 0")
        for u in range(4):
            b = O(t, 2 * u)
            s.e(f"v_permlane16_swap_b32 v{b}, v{b+2}", f"v_permlane16_swap_b32 v{b+1}, v{b+3}",
                f"buffer_store_dwordx4 {vr(b)}, v{VOO}, {sr(SO)}, s{sT+t} offen offset:{64*u}{POL[OPT['opol']]}")
    stamp(s)
    if OPT['stamps']:
        s.e("s_waitcnt vmcnt(0)")
        stamp(s)
        s.e(f"v_mbcnt_lo_u32_b32 v0, -1, 0", "v_mbcnt_hi_u32_b32 v0, -1, v0", "v_lshlrev_b32 v0, 2, v0",
            f"s_lshl_b32 s3, s{sW}, 8", "v_add_u32 v0, s3, v0", f"v_add_u32 v1, {STAMPS}, v0",
            "ds_read_b32 v2, v1", "s_lshl_b32 s3, s2, 10", "v_add_u32 v0, s3, v0", "s_waitcnt lgkmcnt(0)",
            f"global_store_dword v0, v2, s[{sStamp}:{sStamp+1}]")
    if OPT['probe'] >= 0:
        a, b = OPT['pa'], OPT['pb']
        s.e(f"v_mov_b32 v0, s{sW}", "v_lshlrev_b32 v0, 8, v0", f"v_add_u32 v0, {STAMPS}, v0",
            "ds_read_b64 v[2:3], v0", f"ds_read_b64 v[4:5], v0 offset:{8*a}", f"ds_read_b64 v[6:7], v0 offset:{8*b}",
            "s_waitcnt lgkmcnt(0)", "v_sub_u32 v6, v6, v4", "v_sub_u32 v7, v7, v5")
        s.e(["v_mov_b32 v6, 5000", "v_lshlrev_b32 v6, 2, v6", "v_lshrrev_b32 v6, 3, v7"][OPT['probe']])
        s.e("v_add_u32 v6, 10000, v6", "s_nop 1", "v_readfirstlane_b32 s60, v6", "v_readfirstlane_b32 s61, v2", "s_nop 3",
            "s_mov_b32 s61, s64" if OPT['early'] else "s_nop 0",
            "L_spin:", "s_memrealtime s[62:63]", "s_waitcnt lgkmcnt(0)", "s_sub_u32 s62, s62, s61",
            "s_cmp_lt_u32 s62, s60", "s_cbranch_scc1 L_spin")
    s.e("L_end:", "s_endpgm")
    return s

def est_cycles(seq):
    tot, cur, nsc, inm = 0, 0, 0, False
    for i in seq:
        if i.kind == 'pseudo':
            continue
        if i.kind == 'mfma':
            tot += max(16, cur) if inm else cur
            cur, nsc, inm = 8, 0, True
        elif rank(i) == 0:
            nsc += 1
            n = i.n if i.kind == 'nop' else 1
            cur += 4 * n - (4 if (inm and nsc == 1 and cur == 8) else 0)
        else:
            cur += cost(i)
    return tot + (max(16, cur) if inm else cur)

def build():
    pro, bnd, fin = prologue(), boundary(), finale()
    A = [body_a(k) for k in range(7)]
    B = [body_b(k) for k in range(7)]
    tr = Seg(pro + sum(A, []) + bnd + sum(B, []) + fin)
    res = resolve_waits(tr)
    apply_waits(tr, res)
    for X in (A, B):
        for k in range(1, 7):
            assert [i.text for i in X[k]] == [i.text for i in X[0]], "loop body not periodic"
    probs = check(tr, "trace") + check_ring(tr)
    for p in sorted(set(probs))[:40]:
        print(p, file=sys.stderr)
    if probs:
        print(len(probs), "problems", file=sys.stderr)
    print("est cycles: pro", est_cycles(pro), "A", est_cycles(A[0]), "bnd", est_cycles(bnd), "B", est_cycles(B[0]),
          "fin", est_cycles(fin), "total", est_cycles(tr), file=sys.stderr)
    text = Seg(pro)
    text.e("L_loopA:"); text.extend(A[0]); text.extend(bnd)
    text.e("L_loopB:"); text.extend(B[0]); text.extend(fin)
    hdr = open("standalone__mha_softmax__near_ridge.s.ref").read().split("; Override launch")[0]
    out = hdr + "; @launch grid=(256,1,1) block=(256,1,1) lds=163840\n"
    out += f'.amdgcn_target "amdgcn-amd-amdhsa--gfx950"\n.text\n.globl {KN}\n.p2align 8\n.type {KN},@function\n{KN}:\n'
    for i in text:
        out += ("" if i.kind == 'pseudo' else "    ") + i.text + "\n"
    out += ".p2align 7\nL_code_end:\n"
    out += f'''.section .rodata,"a"
.p2align 6
.amdhsa_kernel {KN}
  .amdhsa_next_free_vgpr 512
  .amdhsa_next_free_sgpr 96
  .amdhsa_accum_offset 256
  .amdhsa_group_segment_fixed_size 0
  .amdhsa_kernarg_size 48
  .amdhsa_user_sgpr_count 2
  .amdhsa_user_sgpr_kernarg_segment_ptr 1
  .amdhsa_system_sgpr_workgroup_id_x 1
.end_amdhsa_kernel
'''
    return out

if __name__ == "__main__":
    path = sys.argv[1]
    for a in sys.argv[2:]:
        k, v = a.split("=")
        OPT[k] = int(v)
    open(path, "w").write(build())
```

```python
import sys, struct, math
from asmlib import Ins, check, resolve_waits, apply_waits, check_ring

KN = "standalone__mha_softmax__near_ridge_kernel"
NT = 5
OPT = dict(noq=0, noo=0, nobar=0, nodma=0, stamps=0, early=0, probe=-1, pa=0, pb=0, kvpol=0, qpol=1, opol=4, oapol=0)
POL = ['', ' nt', ' sc1', ' sc1 nt', ' sc0 sc1', ' sc0 sc1 nt', ' sc0', ' sc0 nt']

def O(t, db): return 32 * t + 4 * db
S0, P0, NM0, VKA, VVA = 160, 176, 192, 212, 216
VDK, VDV, VIDX, VQG, VSL, VOS, VQR = 224, 225, 226, 227, 228, 229, 230
VX, VT, VST = 232, 244, 252
def S(n): return S0 + 8 * (n & 1)
def P(n): return P0 + 4 * (n & 3)
def NM(t): return NM0 + 4 * t
def AQ(t, ks): return 16 * t + 4 * ks
def AK(par, j, ks): return 80 + 32 * par + 16 * j + 4 * ks
def AV(par, db): return 144 + 32 * par + 4 * db
AONE = 208
def AL(k): return 212 + 4 * k
SK, SV, SQ, SO = 12, 16, 20, 24
sOff, sWL, sCnt, sCh, sC, sFlag, sW, sHalf, sHead, sMask, sStage = 28, 29, 30, 31, 32, 34, 35, 36, 37, 38, 39
sT = 40
sTmp = 46
sStamp = 56
VBASE = 32768
STAGE, STW = 65536, 21504
STAMPS = 0x26000
HEADQ, HEADK = 624 * 256, 1024 * 256
THR = 2.0 ** 30

def vr(b, n=4): return f"v[{b}:{b+n-1}]"
def ar(b, n=4): return f"a[{b}:{b+n-1}]"
def sr(b, n=4): return f"s[{b}:{b+n-1}]"
def f32(x): return "0x%08x" % struct.unpack("<I", struct.pack("<f", x))[0]

def I(text, **kw):
    i = Ins(text)
    for k, v in kw.items():
        setattr(i, k, v)
    return i

def W(key, vm=None, ds=None):
    return I("s_waitcnt vmcnt(0)", key=key, need_vm=vm, need_ds=ds)

class Seg(list):
    def e(self, *lines):
        for l in lines:
            if isinstance(l, Ins):
                self.append(l)
            elif l:
                self.append(Ins(l))

def cost(i):
    if i.kind in ('trans', 'vmem'):
        return 8
    if i.kind == 'ds':
        return 8 if i.op.startswith('ds_write') else 4
    return 4

class Gap:
    def __init__(self, mf):
        self.mf = mf if isinstance(mf, Ins) else Ins(mf)
        self.sc, self.mem, self.val = [], [], []
        self.block = 0
    def used(self):
        return self.block + sum(map(cost, self.mem + self.val)) + 4 * max(0, len(self.sc) - 1)
    def put(self, i):
        i = i if isinstance(i, Ins) else Ins(i)
        (self.val if i.kind in ('valu', 'trans') else self.mem if i.kind in ('ds', 'vmem') else self.sc).append(i)
    def out(self):
        return [self.mf] + self.sc + self.mem + self.val

def rank(i):
    return 2 if i.kind in ('valu', 'trans') else 1 if i.kind in ('ds', 'vmem') else 0

def fill(gaps, ops):
    ops = [o if isinstance(o, (Ins, int)) else Ins(o) for o in ops]
    glue = lambda o: o.op in ('s_addc_u32', 's_cselect_b32')
    for cap in range(8, 400, 4):
        plan, g, last, extra, nsc = [], 0, -1, {}, {}
        ok = True
        for o in ops:
            if isinstance(o, int):
                g += o; last = -1
                continue
            r = rank(o)
            if r < last:
                g += 1
            while g < len(gaps):
                u = gaps[g].used() + extra.get(g, 0)
                if r == 0:
                    c = 0 if (len(gaps[g].sc) + nsc.get(g, 0)) == 0 else 4
                    if c == 0 or u + c <= cap or glue(o):
                        break
                else:
                    c = cost(o)
                    if u + c <= cap:
                        break
                g += 1
            if g >= len(gaps):
                ok = False
                break
            extra[g] = extra.get(g, 0) + c
            if r == 0:
                nsc[g] = nsc.get(g, 0) + 1
            plan.append((g, o)); last = r
        if ok:
            for g, o in plan:
                gaps[g].put(o)
            return cap
    raise RuntimeError("cannot fill")

def flat(gaps):
    s = Seg()
    for g in gaps:
        s.extend(g.out())
    return s

def stamp(s):
    if OPT['stamps']:
        s.e(f"s_memrealtime s[{sTmp}:{sTmp+1}]", f"s_memtime s[{sTmp+2}:{sTmp+3}]", "s_waitcnt lgkmcnt(0)",
            f"v_mov_b32 v{VST}, s{sTmp}", f"v_mov_b32 v{VST+1}, s{sTmp+2}",
            f"ds_write_b64 v{VST+2}, {vr(VST, 2)}", f"v_add_u32 v{VST+2}, 8, v{VST+2}", "s_waitcnt lgkmcnt(0)")

def frag_reads(gb):
    par, slot = gb & 1, gb & 3
    r = []
    for j in range(2):
        for ks in range(4):
            r.append(I(f"ds_read_b128 {ar(AK(par, j, ks))}, v{VKA+ks} offset:{slot*8192 + j*4096}",
                       tag=('K', gb), use=('K', gb, slot)))
    for db in range(8):
        for u in range(2):
            r.append(I(f"ds_read_b64_tr_b16 {ar(AV(par, db) + 2*u, 2)}, v{VVA+db} offset:{VBASE + slot*8192 + u*4096}",
                       tag=('V', gb), use=('V', gb, slot)))
    return r

def dma(gb, part):
    i, isv, slot = part >> 1, part & 1, gb & 3
    m0 = I(f"s_add_u32 m0, s{sWL}, {isv*VBASE + slot*8192 + i*4096}")
    ld = I(f"buffer_load_dwordx4 v{VDV if isv else VDK}, {sr(SV if isv else SK)}, s{sOff} offen{POL[OPT['kvpol']]} lds",
           tag=('D', gb), fill=('V' if isv else 'K', gb, slot, 2))
    adv = I(f"s_add_u32 s{sOff}, s{sOff}, 4096") if isv else None
    return m0, ld, adv

def qk(n):
    t, b = n % 5, n // 5
    r = []
    for j in range(2):
        d = S(n) + 4 * j
        for ks in range(4):
            c = vr(NM(t)) if ks == 0 else vr(d)
            r.append(f"v_mfma_f32_16x16x32_bf16 {vr(d)}, {ar(AK(b & 1, j, ks))}, {ar(AQ(t, ks))}, {c}")
    return r

def pv(n):
    t, b = n % 5, n // 5
    return [f"v_mfma_f32_16x16x32_bf16 {vr(O(t, db))}, {ar(AV(b & 1, db))}, {vr(P(n))}, {'0' if b == 0 else vr(O(t, db))}"
            for db in range(8)]

def smf(n):
    return f"v_smfmac_f32_16x16x64_bf16 {ar(AL(((n - 2) // 2) % 5))}, {ar(AONE)}, {vr(P(n - 2), 8)}, v{VIDX}"

def step(p, n, key):
    a = qk(n + 1) if n + 1 <= 159 else []
    c = pv(n - 1) if n >= 1 else []
    ex = [f"v_exp_f32 v{S(n)+k}, v{S(n)+k}" for k in range(8)] if 0 <= n <= 159 else []
    cv = [f"v_cvt_pk_bf16_f32 v{P(n)+k}, v{S(n)+2*k}, v{S(n)+2*k+1}" for k in range(4)] if ex else []
    wb, wi = (n - 1) // 5, (n - 1) % 5
    gb = 32 * p + wb
    rd = frag_reads(gb + 1)[5 * wi:5 * wi + 5] if (n >= 1 and gb + 1 <= 63) else []
    dm = dma(gb + 4, wi) if (n >= 1 and wi < 4 and (gb + 4 <= 63 or key[0] == 'loop')) else None
    if OPT['nodma']:
        dm = None
    bar = n >= 1 and wi == 0
    G = [Gap(m) for m in a + c]
    full = len(G) == 16
    if full:
        for k in range(8):
            G[2 * k].put(ex[k])
        for k in range(4):
            G[4 * k + 3].put(cv[k])
        rg = [3, 7, 9, 11, 13] if bar else [1, 3, 7, 9, 11]
        for g, r in zip(rg, rd):
            G[g].put(r)
        if dm:
            G[2].put(dm[0]); G[5].put(dm[1])
            if dm[2]:
                G[7].put(dm[2])
        if bar:
            G[0].put(W(key + ('bar',), vm={('D', gb + 1)}, ds={('K', gb), ('V', gb)}))
            if gb + 1 <= 63 and not OPT['nobar']:
                G[1].put("s_barrier"); G[1].block = 8
        if wi == 2 and rd:
            G[15].put(W(key + ('k',), ds={('K', gb + 1)}))
        if n >= 2 and n % 2 == 0:
            G.insert(8, Gap(smf(n)))
        return G
    if n == -1:
        G[7].put("s_nop 3")
    elif n == 0 or n == 159:
        for g in range(8):
            if g >= 2 and g % 2 == 0:
                G[g].put(cv[g // 2 - 1])
            G[g].put(ex[g])
        for g, r in enumerate(rd):
            G[g].put(r)
        if dm:
            G[0].put(dm[0]); G[6].put(dm[1])
            if dm[2]:
                G[7].put(dm[2])
        G[7].val += [Ins("s_nop 0"), Ins(cv[3])]
        if n == 159:
            G[7].val.append(Ins("s_nop 1"))
    elif n == 160:
        G.insert(0, Gap(smf(n)))
        for g, r in enumerate(rd):
            G[g].put(r)
    return G

def scale_ops(x, t, packed):
    r = []
    if packed:
        for k in range(4):
            r += [f"v_lshlrev_b32 v{t+2*k}, 16, v{x+k}", f"v_and_b32 v{t+2*k+1}, s{sMask}, v{x+k}"]
        r += [f"v_pk_mul_f32 {vr(t+2*k, 2)}, {vr(t+2*k, 2)}, {sr(sC, 2)}" for k in range(4)]
        r += [f"v_cvt_pk_bf16_f32 v{x+k}, v{t+2*k}, v{t+2*k+1}" for k in range(4)]
        return r
    for h in range(2):
        for k in range(2):
            r += [f"v_lshlrev_b32 v{t+2*k}, 16, v{x+2*h+k}", f"v_and_b32 v{t+2*k+1}, s{sMask}, v{x+2*h+k}"]
        r += [f"v_mul_f32 v{t+k}, s{sC}, v{t+k}" for k in range(4)]
        r += [f"v_cvt_pk_bf16_f32 v{x+2*h+k}, v{t+2*k}, v{t+2*k+1}" for k in range(2)]
    return r

def qb_load(i, c):
    return [I(f"buffer_load_dwordx4 {vr(VX+4*c)}, v{VQG}, {sr(SQ)}, s{sCh} offen{POL[OPT['qpol']]}", tag=('QB', i)),
            f"s_add_u32 s{sCh}, s{sCh}, 1024"]

def q_frag_reads(t, adr):
    return [I(f"ds_read_b128 {ar(AQ(t, ks))}, v{adr[ks]} offset:{4096*t}", tag=('Q', t)) for ks in range(4)]

def srd_rows(srd, ptr, p):
    a, b, c = sTmp, sTmp + 1, sTmp + 2
    return [f"s_xor_b32 s{b}, s{sHalf}, {p}", f"s_mul_i32 s{b}, s{b}, {320*256}",
            f"s_mul_i32 s{c}, s{sW}, {80*256}", f"s_add_u32 s{b}, s{b}, s{c}",
            f"s_add_u32 s{a}, s{sHead}, {p}", f"s_mul_i32 s{a}, s{a}, {HEADQ}", f"s_add_u32 s{a}, s{a}, s{b}",
            f"s_add_u32 s{srd}, s{ptr}, s{a}", f"s_addc_u32 s{srd+1}, s{ptr+1}, 0",
            f"s_sub_u32 s{b}, {HEADQ}, s{b}", f"s_min_u32 s{srd+2}, s{b}, {80*256}", f"s_mov_b32 s{srd+3}, 0x20000"]

def mref_mfma(t):
    return [f"v_mfma_f32_16x16x32_bf16 {vr(NM(t))}, {ar(AK(0, 0, ks))}, {ar(AQ(t, ks))}, {'0' if ks == 0 else vr(NM(t))}"
            for ks in range(4)]

def mref_valu(ts):
    r = []
    pad = ["s_nop 1"] if len(ts) < 3 else []
    r += [f"v_max3_f32 v{NM(t)}, v{NM(t)}, v{NM(t)+1}, v{NM(t)+2}" for t in ts]
    r += [f"v_max_f32 v{NM(t)}, v{NM(t)}, v{NM(t)+3}" for t in ts]
    for sw in ("v_permlane16_swap_b32", "v_permlane32_swap_b32"):
        r += [f"v_mov_b32 v{NM(t)+1}, v{NM(t)}" for t in ts] + pad
        r += [f"{sw} v{NM(t)}, v{NM(t)+1}" for t in ts]
        r += [f"v_max_f32 v{NM(t)}, v{NM(t)}, v{NM(t)+1}" for t in ts]
    for t in ts:
        r += [f"v_sub_f32 v{NM(t)+k}, 0, v{NM(t)}" for k in (3, 2, 1, 0)]
    return r

def prologue():
    s = Seg()
    T = VT
    if OPT['early']:
        s.e("s_memrealtime s[64:65]")
    s.e("s_load_dwordx4 s[4:7], s[0:1], 0", "s_load_dwordx4 s[8:11], s[0:1], 16")
    if OPT['stamps']:
        s.e(f"s_load_dwordx2 s[{sStamp}:{sStamp+1}], s[0:1], 40")
    s.e("s_cmp_ge_u32 s2, 256", "s_cbranch_scc1 L_end")
    Wv, L, Q16, G, R, X, Y = T, T + 1, T + 2, T + 3, T + 4, T + 5, T + 6
    s.e(f"v_lshrrev_b32 v{Wv}, 6, v0", f"v_and_b32 v{L}, 63, v0", f"v_lshlrev_b32 v{X}, 7, v0",
        f"v_readfirstlane_b32 s{sW}, v{Wv}", f"s_getpc_b64 s[{sTmp}:{sTmp+1}]",
        f"v_min_u32 v{X}, L_code_end-{KN}-128, v{X}",
        I(f"global_load_dword v{VX}, v{X}, s[{sTmp}:{sTmp+1}]", tag='pf'))
    s.e(f"s_and_b32 s{sHead}, s2, 7", f"s_lshl_b32 s{sHead}, s{sHead}, 5",
        f"s_lshr_b32 s3, s2, 3", f"s_and_b32 s{sHalf}, s3, 1", f"s_and_b32 s3, s3, 30",
        f"s_add_u32 s{sHead}, s{sHead}, s3", f"s_lshl_b32 s{sWL}, s{sW}, 10")
    s.e(f"v_and_b32 v{Q16}, 15, v{L}", f"v_lshrrev_b32 v{G}, 4, v{L}",
        f"v_lshl_add_u32 v{R}, v{Wv}, 2, v{G}",
        f"v_xor_b32 v{X}, v{Q16}, v{R}", f"v_lshlrev_b32 v{X}, 4, v{X}", f"v_lshl_add_u32 v{VDK}, v{R}, 8, v{X}",
        f"v_lshlrev_b32 v{X}, 2, v{G}", f"v_xor_b32 v{X}, v{Q16}, v{X}", f"v_lshlrev_b32 v{X}, 4, v{X}",
        f"v_lshl_add_u32 v{VQG}, v{G}, 8, v{X}",
        f"v_and_b32 v{X}, 7, v{R}", f"v_lshlrev_b32 v{X}, 1, v{X}", f"v_xor_b32 v{X}, v{Q16}, v{X}",
        f"v_lshlrev_b32 v{X}, 4, v{X}", f"v_lshl_add_u32 v{VDV}, v{R}, 8, v{X}")
    s.e(f"s_mul_i32 s3, s{sHead}, {HEADK}", f"s_mov_b32 s{SK+2}, {2*HEADK}", f"s_mov_b32 s{SK+3}, 0x20000",
        f"s_mov_b32 s{SV+2}, {2*HEADK}", f"s_mov_b32 s{SV+3}, 0x20000", f"s_mov_b32 s{sOff}, 0")
    for t in range(NT):
        s.e(f"s_mov_b32 s{sT+t}, {4096*t}")
    rows = srd_rows(SQ, 4, 0)
    s.e(*rows[:7])
    if OPT['stamps']:
        s.e(f"v_lshlrev_b32 v{VST+2}, 8, v{Wv}", f"v_add_u32 v{VST+2}, {STAMPS}, v{VST+2}")
    s.e("s_waitcnt lgkmcnt(0)")
    s.e(f"s_add_u32 s{SK}, s6, s3", f"s_addc_u32 s{SK+1}, s7, 0", *rows[7:],
        f"s_add_u32 s{SV}, s8, s3", f"s_addc_u32 s{SV+1}, s9, 0")
    stamp(s)
    def blk(gb):
        for p in range(4):
            m0, ld, adv = dma(gb, p)
            s.e(m0, "s_nop 0", ld, adv)
    def qload(t):
        for c in range(4):
            s.e(I(f"buffer_load_dwordx4 {vr(80 + 16*t + 4*c)}, v{VQG}, {sr(SQ)}, s{sT+t} offen offset:{1024*c}{POL[OPT['qpol']]}",
                  tag=('QA', t)))
    adr = [VQR, VX + 1, VX + 2, VX + 3]
    def qprep(t):
        s.e(W(('pro', 'q', t), vm={('QA', t)}))
        if t == 0:
            stamp(s)
        for c in range(4):
            s.e(*scale_ops(80 + 16 * t + 4 * c, VX + 4, True))
        for c in range(4):
            s.e(f"ds_write_b128 v{VSL}, {vr(80 + 16*t + 4*c)} offset:{4096*t + 1024*c}")
        s.e(*q_frag_reads(t, adr))
    def mref(t):
        s.e(W(('pro', 'm', t), ds={('Q', t), ('K', 0)}), *mref_mfma(t), "s_nop 7", *mref_valu([t]), "s_nop 1")
    qload(0); blk(0); qload(1)
    s.e(f"s_mov_b32 s{sFlag}, 0", f"s_mov_b32 s{sMask}, 0xffff0000",
        f"s_mov_b32 s{sC}, {f32(math.log2(math.e) / math.sqrt(128.0))}", f"s_mov_b32 s{sC+1}, s{sC}",
        f"s_mul_i32 s{sStage}, s{sW}, {STW}", f"s_add_u32 s{sStage}, s{sStage}, {STAGE}")
    for ks in range(4):
        s.e(f"v_add_u32 v{X}, {4*ks}, v{G}", f"v_xor_b32 v{X}, v{X}, v{Q16}", f"v_lshlrev_b32 v{X}, 4, v{X}",
            f"v_lshl_add_u32 v{VKA+ks}, v{Q16}, 8, v{X}")
    s.e(f"v_lshrrev_b32 v{X}, 2, v{L}", f"v_and_b32 v{Y}, 3, v{L}", f"v_lshlrev_b32 v{Y}, 3, v{Y}",
        f"v_lshl_add_u32 v{Y}, v{X}, 8, v{Y}", f"v_and_b32 v{X}, 7, v{X}")
    for db in range(8):
        s.e(f"v_xor_b32 v{R}, {db}, v{X}", f"v_lshl_add_u32 v{VVA+db}, v{R}, 5, v{Y}")
    s.e(f"v_lshlrev_b32 v{X}, 4, v{G}", f"v_lshl_add_u32 v{VOS}, v{Q16}, 8, v{X}",
        f"v_lshl_add_u32 v{VSL}, v{L}, 4, s{sStage}",
        f"v_and_b32 v{X}, 3, v{L}", f"v_lshl_add_u32 v{X}, v{X}, 6, v{VOS}", f"v_add_u32 v{VQR}, s{sStage}, v{X}")
    s.e(f"v_and_b32 v{X}, 1, v{L}", f"v_mul_u32_u24 v{X}, 0xaaaa, v{X}", f"v_add_u32 v{VIDX}, 0x4444, v{X}",
        f"v_lshrrev_b32 v{X}, 1, v{L}", f"v_lshrrev_b32 v{Y}, 5, v{L}", f"v_xor_b32 v{X}, v{X}, v{Y}",
        f"v_and_b32 v{X}, 1, v{X}", f"v_add_u32 v{X}, -1, v{X}", f"v_and_b32 v{X}, 0x3f803f80, v{X}")
    for r in range(4):
        s.e(f"v_accvgpr_write_b32 a{AONE+r}, v{X}")
    for k in range(20):
        s.e(f"v_accvgpr_write_b32 a{AL(0)+k}, 0")
    for ks in range(1, 4):
        s.e(f"v_xor_b32 v{adr[ks]}, {64*ks}, v{VQR}")
    qprep(0)
    qload(2)
    s.e(W(('pro', 'b0'), vm={('D', 0)}), "s_barrier", *frag_reads(0))
    blk(1)
    mref(0)
    s.extend(flat(step(0, -1, ('peelA', -1))))
    qprep(1); qload(3); mref(1)
    s.extend(flat(step(0, 0, ('peelA', 0))))
    qprep(2); qload(4); blk(2); blk(3); mref(2)
    s.extend(flat(step(0, 1, ('peelA', 1))))
    qprep(3); mref(3)
    s.extend(flat(step(0, 2, ('peelA', 2))))
    qprep(4); mref(4)
    stamp(s)
    G = []
    for n in range(3, 15):
        G += step(0, n, ('peelA', n))
    k = len(G)
    fill(G, srd_rows(SQ, 4, 1) + [f"s_mov_b32 s{sCh}, 0", f"s_mov_b32 s{sCnt}, 7", 4] +
         qb_load(0, 0) + [20] + qb_load(1, 1) + [20] + qb_load(2, 2))
    s.extend(flat(G))
    return s

def loop_end(G):
    G[-4].put(f"s_sub_u32 s{sCnt}, s{sCnt}, 1")
    G[-2].put(f"s_cmp_lg_u32 s{sCnt}, 0")
    assert not any(i.kind == 'salu' for i in G[-1].sc + G[-2].sc[:-1])

def body_a(trip):
    n0 = 15 + 20 * trip
    st = [step(0, n0 + k, ('loop', 'A', k)) for k in range(20)]
    loop_end(st[19])
    for c, (a, b) in enumerate(((0, 6), (6, 13), (13, 19))):
        i = 3 * trip + c
        ops = [W(('loop', 'A', 'q', c), vm={('QB', i)})] + scale_ops(VX + 4 * c, VT, False)
        ops += [f"ds_write_b128 v{VSL}, {vr(VX+4*c)} offset:{1024*c}", 2] + qb_load(i + 3, c)
        if c == 2:
            ops += [f"v_add_u32 v{VSL}, 3072, v{VSL}"]
        if OPT['noq']:
            continue
        cap = fill(sum(st[a:b], []), ops)
        assert cap == 8, cap
    s = Seg()
    if OPT['stamps'] > 1:
        stamp(s)
    s.extend(flat(sum(st, [])))
    s.e("s_cbranch_scc1 L_loopA")
    return s

def l_ops(T, Lr, bit):
    r = [f"v_accvgpr_read_b32 v{T+k}, a{AL(0)+k}" for k in range(20)]
    r += [f"v_add_f32 v{T+2*k}, v{T+2*k}, v{T+2*k+1}" for k in range(10)]
    r += [f"v_add_f32 v{Lr+2*t}, v{T+2*t}, v{T+2*(t+5)}" for t in range(NT)]
    r += [f"v_add_f32 v{T}, v{Lr}, v{Lr+2}", f"v_add_f32 v{T+1}, v{Lr+4}, v{Lr+6}",
          f"v_add_f32 v{T}, v{T}, v{Lr+8}", f"v_add_f32 v{T}, v{T}, v{T+1}",
          f"v_cmp_ngt_f32 vcc, {f32(THR)}, v{T}"]
    r += [f"v_rcp_f32 v{Lr+2*t}, v{Lr+2*t}" for t in range(NT)]
    r += ["s_cmp_lg_u64 vcc, 0", f"s_cselect_b32 s{sTmp}, {bit}, 0", f"s_or_b32 s{sFlag}, s{sFlag}, s{sTmp}"]
    return r

def boundary():
    s = Seg()
    adr = [VQR, VT + 1, VT + 2, VT + 3]
    VOW = VT + 4
    st = {n: step(0, n, ('tailA', n)) for n in range(155, 161)}
    fill(st[155], [f"v_xor_b32 v{adr[ks]}, {64*ks}, v{VQR}" for ks in range(1, 4)] + q_frag_reads(0, adr))
    for t in range(1, 5):
        fill(st[155 + t], q_frag_reads(t, adr))
    fill(st[156] + st[157] + st[158], srd_rows(SO, 10, 0) + [
        f"v_add_u32 v{VSL}, {-7*3072}, v{VSL}",
        f"v_and_b32 v{VOW}, 16, v{VOS}", f"v_lshrrev_b32 v{VOW}, 1, v{VOW}",
        f"v_and_b32 v{VOW+1}, 32, v{VOS}", f"v_lshl_add_u32 v{VOW}, v{VOW+1}, 3, v{VOW}",
        f"v_lshrrev_b32 v{VOW+1}, 8, v{VOS}", f"v_lshl_add_u32 v{VOW}, v{VOW+1}, 4, v{VOW}",
        f"v_add_u32 v{VOW}, s{sStage}, v{VOW}"])
    st[158][-1].val.append(Ins("s_nop 1"))
    for n in range(155, 161):
        s.extend(flat(st[n]))
    stamp(s)
    T, Lr = S0, S0 + 20
    s.e(W(('bnd', 'q'), ds={('Q', 4), ('K', 32)}))
    G = [Gap(m) for t in range(NT) for m in mref_mfma(t)]
    fill(G[3:], l_ops(T, Lr, 1) + [f"v_accvgpr_write_b32 a{AL(0)+k}, 0" for k in range(20)])
    s.extend(flat(G))
    for t in range(NT):
        for db in range(8):
            b = O(t, db)
            s.e(*[f"v_pk_mul_f32 {vr(b+2*k, 2)}, {vr(b+2*k, 2)}, {vr(Lr+2*t, 2)} op_sel_hi:[1,0]" for k in range(2)])
        for db in range(8):
            b = O(t, db)
            s.e(*[f"v_cvt_pk_bf16_f32 v{b+k}, v{b+2*k}, v{b+2*k+1}" for k in range(2)])
        for u in range(4):
            s.e(f"ds_write2st64_b64 v{VOW}, {vr(O(t, 2*u), 2)}, {vr(O(t, 2*u+1), 2)} offset0:{8*t+2*u} offset1:{8*t+2*u+1}")
        if t == 0:
            s.e(*mref_valu(range(NT)))
    stamp(s)
    G = []
    for n in range(-1, 9):
        G += step(1, n, ('peelB', n))
    fill(G[40:], [f"s_mov_b32 s{sCh}, 0", f"s_mov_b32 s{sCnt}, 7"])
    s.extend(flat(G))
    return s

def body_b(trip):
    n0 = 9 + 20 * trip
    st = [step(1, n0 + k, ('loop', 'B', k)) for k in range(20)]
    loop_end(st[19])
    for c, (a, b) in enumerate(((0, 6), (6, 13), (13, 19))):
        i = 3 * trip + c
        ops = [I(f"ds_read_b128 {vr(VX)}, v{VSL} offset:{1024*c}", tag=('OA', i)), 16,
               W(('loop', 'B', 'o', c), ds={('OA', i)}),
               f"buffer_store_dwordx4 {vr(VX)}, v{VOS}, {sr(SO)}, s{sCh} offen{POL[OPT['oapol']]}", 2,
               f"s_add_u32 s{sCh}, s{sCh}, 64", f"s_and_b32 s{sTmp}, s{sCh}, 256", f"s_mul_i32 s{sTmp}, s{sTmp}, 15",
               f"s_add_u32 s{sCh}, s{sCh}, s{sTmp}"]
        if c == 2:
            ops += [f"v_add_u32 v{VSL}, 3072, v{VSL}"]
        if OPT['noo']:
            continue
        cap = fill(sum(st[a:b], []), ops)
        assert cap == 8, cap
    s = Seg()
    if OPT['stamps'] > 1:
        stamp(s)
    s.extend(flat(sum(st, [])))
    s.e("s_cbranch_scc1 L_loopB")
    return s

def finale():
    s = Seg()
    VOO = VT + 4
    st = {n: step(1, n, ('tailB', n)) for n in range(149, 161)}
    fill(st[152] + st[153] + st[154], srd_rows(SO, 10, 1) + [
        f"v_and_b32 v{VOO}, 16, v{VOS}", f"v_and_b32 v{VOO+1}, 32, v{VOS}", f"v_lshrrev_b32 v{VOO+1}, 1, v{VOO+1}",
        f"v_lshl_add_u32 v{VOO}, v{VOO}, 1, v{VOO+1}", f"v_and_b32 v{VOO+1}, 0xf00, v{VOS}",
        f"v_add_u32 v{VOO}, v{VOO}, v{VOO+1}"])
    st[158][-1].val.append(Ins("s_nop 1"))
    for n in range(149, 161):
        s.extend(flat(st[n]))
    stamp(s)
    T, Lr = S0, S0 + 20
    s.e("s_nop 3", *l_ops(T, Lr, 2))
    for t in range(NT):
        for u in range(4):
            b = O(t, 2 * u)
            s.e(*[f"v_pk_mul_f32 {vr(b+2*k, 2)}, {vr(b+2*k, 2)}, {vr(Lr+2*t, 2)} op_sel_hi:[1,0]" for k in range(4)])
            s.e(*[f"v_cvt_pk_bf16_f32 v{b+k}, v{b+2*k}, v{b+2*k+1}" for k in range(4)])
        s.e("s_nop 0")
        for u in range(4):
            b = O(t, 2 * u)
            s.e(f"v_permlane16_swap_b32 v{b}, v{b+2}", f"v_permlane16_swap_b32 v{b+1}, v{b+3}",
                f"buffer_store_dwordx4 {vr(b)}, v{VOO}, {sr(SO)}, s{sT+t} offen offset:{64*u}{POL[OPT['opol']]}")
    stamp(s)
    if OPT['stamps']:
        s.e("s_waitcnt vmcnt(0)")
        stamp(s)
        s.e(f"v_mbcnt_lo_u32_b32 v0, -1, 0", "v_mbcnt_hi_u32_b32 v0, -1, v0", "v_lshlrev_b32 v0, 2, v0",
            f"s_lshl_b32 s3, s{sW}, 8", "v_add_u32 v0, s3, v0", f"v_add_u32 v1, {STAMPS}, v0",
            "ds_read_b32 v2, v1", "s_lshl_b32 s3, s2, 10", "v_add_u32 v0, s3, v0", "s_waitcnt lgkmcnt(0)",
            f"global_store_dword v0, v2, s[{sStamp}:{sStamp+1}]")
    if OPT['probe'] >= 0:
        a, b = OPT['pa'], OPT['pb']
        s.e(f"v_mov_b32 v0, s{sW}", "v_lshlrev_b32 v0, 8, v0", f"v_add_u32 v0, {STAMPS}, v0",
            "ds_read_b64 v[2:3], v0", f"ds_read_b64 v[4:5], v0 offset:{8*a}", f"ds_read_b64 v[6:7], v0 offset:{8*b}",
            "s_waitcnt lgkmcnt(0)", "v_sub_u32 v6, v6, v4", "v_sub_u32 v7, v7, v5")
        s.e(["v_mov_b32 v6, 5000", "v_lshlrev_b32 v6, 2, v6", "v_lshrrev_b32 v6, 3, v7"][OPT['probe']])
        s.e("v_add_u32 v6, 10000, v6", "s_nop 1", "v_readfirstlane_b32 s60, v6", "v_readfirstlane_b32 s61, v2", "s_nop 3",
            "s_mov_b32 s61, s64" if OPT['early'] else "s_nop 0",
            "L_spin:", "s_memrealtime s[62:63]", "s_waitcnt lgkmcnt(0)", "s_sub_u32 s62, s62, s61",
            "s_cmp_lt_u32 s62, s60", "s_cbranch_scc1 L_spin")
    s.e("L_end:", "s_endpgm")
    return s

def est_cycles(seq):
    tot, cur, nsc, inm = 0, 0, 0, False
    for i in seq:
        if i.kind == 'pseudo':
            continue
        if i.kind == 'mfma':
            tot += max(16, cur) if inm else cur
            cur, nsc, inm = 8, 0, True
        elif rank(i) == 0:
            nsc += 1
            n = i.n if i.kind == 'nop' else 1
            cur += 4 * n - (4 if (inm and nsc == 1 and cur == 8) else 0)
        else:
            cur += cost(i)
    return tot + (max(16, cur) if inm else cur)

def build():
    pro, bnd, fin = prologue(), boundary(), finale()
    A = [body_a(k) for k in range(7)]
    B = [body_b(k) for k in range(7)]
    tr = Seg(pro + sum(A, []) + bnd + sum(B, []) + fin)
    res = resolve_waits(tr)
    apply_waits(tr, res)
    for X in (A, B):
        for k in range(1, 7):
            assert [i.text for i in X[k]] == [i.text for i in X[0]], "loop body not periodic"
    probs = check(tr, "trace") + check_ring(tr)
    for p in sorted(set(probs))[:40]:
        print(p, file=sys.stderr)
    if probs:
        print(len(probs), "problems", file=sys.stderr)
    print("est cycles: pro", est_cycles(pro), "A", est_cycles(A[0]), "bnd", est_cycles(bnd), "B", est_cycles(B[0]),
          "fin", est_cycles(fin), "total", est_cycles(tr), file=sys.stderr)
    text = Seg(pro)
    text.e("L_loopA:"); text.extend(A[0]); text.extend(bnd)
    text.e("L_loopB:"); text.extend(B[0]); text.extend(fin)
    hdr = open("standalone__mha_softmax__near_ridge.s.ref").read().split("; Override launch")[0]
    out = hdr + "; @launch grid=(256,1,1) block=(256,1,1) lds=163840\n"
    out += f'.amdgcn_target "amdgcn-amd-amdhsa--gfx950"\n.text\n.globl {KN}\n.p2align 8\n.type {KN},@function\n{KN}:\n'
    for i in text:
        out += ("" if i.kind == 'pseudo' else "    ") + i.text + "\n"
    out += ".p2align 7\nL_code_end:\n"
    out += f'''.section .rodata,"a"
.p2align 6
.amdhsa_kernel {KN}
  .amdhsa_next_free_vgpr 512
  .amdhsa_next_free_sgpr 96
  .amdhsa_accum_offset 256
  .amdhsa_group_segment_fixed_size 0
  .amdhsa_kernarg_size 48
  .amdhsa_user_sgpr_count 2
  .amdhsa_user_sgpr_kernarg_segment_ptr 1
  .amdhsa_system_sgpr_workgroup_id_x 1
.end_amdhsa_kernel
'''
    return out

if __name__ == "__main__":
    path = sys.argv[1]
    for a in sys.argv[2:]:
        k, v = a.split("=")
        OPT[k] = int(v)
    open(path, "w").write(build())
```

```python
import sys, struct, math
from asmlib import Ins, check, resolve_waits, apply_waits, check_ring

KN = "standalone__mha_softmax__near_ridge_kernel"
NT = 5
OPT = dict(stamps=0, early=0, probe=-1, pa=0, pb=0, kvpol=0, qpol=1, opol=1, olast=1, oapol=4, waves=4, beta=4)
POL = ['', ' nt', ' sc1', ' sc1 nt', ' sc0 sc1', ' sc0 sc1 nt', ' sc0', ' sc0 nt']

def O(t, db): return 32 * t + 4 * db
S0, P0, NM0, VKA, VVA = 160, 176, 192, 212, 216
VDK, VDV, VIDX, VQG, VSL, VOS, VQR, VLN = 224, 225, 226, 227, 228, 229, 230, 231
VX, VT, VST = 232, 244, 253
VPF, VPD = 252, 251
def S(n): return S0 + 8 * (n & 1)
def P(n): return P0 + 4 * (n & 3)
def NM(t): return NM0 + 4 * t
def AQ(t, ks): return 16 * t + 4 * ks
def AK(par, j, ks): return 80 + 32 * par + 16 * j + 4 * ks
def AV(par, db): return 144 + 32 * par + 4 * db
AONE, AONE2 = 208, 232
def AL(k): return 212 + 4 * k
SK, SV, SQ, SO = 12, 16, 20, 24
sOff, sWL, sCnt, sCh, sC, sFlag, sW, sHalf, sHead, sMask, sStage = 28, 29, 30, 31, 32, 34, 35, 36, 37, 38, 39
sT = 40
sTmp = 46
sStamp = 56
sPC = 58
VBASE = 32768
STAGE, STW = 65536, 21504
STAMPS = 0x26000
HEADQ, HEADK = 624 * 256, 1024 * 256
THR = 2.0 ** 30
LAST = 319

def vr(b, n=4): return f"v[{b}:{b+n-1}]"
def ar(b, n=4): return f"a[{b}:{b+n-1}]"
def sr(b, n=4): return f"s[{b}:{b+n-1}]"
def f32(x): return "0x%08x" % struct.unpack("<I", struct.pack("<f", x))[0]

def I(text, **kw):
    i = Ins(text)
    for k, v in kw.items():
        setattr(i, k, v)
    return i

def W(key, vm=None, ds=None):
    return I("s_waitcnt vmcnt(0)", key=key, need_vm=vm, need_ds=ds)

class Seg(list):
    def e(self, *lines):
        for l in lines:
            if isinstance(l, Ins):
                self.append(l)
            elif isinstance(l, int):
                self.append(Ins("s_nop 1"))
            elif l:
                self.append(Ins(l))

def cost(i):
    if i.kind == 'trans' or i.op.startswith('v_permlane'):
        return 8
    if i.kind == 'vmem':
        return 20 if 'store' in i.op else (16 if i.op == 'buffer_load_dwordx4' and 'lds' not in i.mods else 8)
    if i.kind == 'ds':
        return {'ds_write_b128': 20, 'ds_write2_b64': 20, 'ds_write_b64': 12, 'ds_write_b32': 8}.get(i.op, 4)
    if i.kind == 'nop':
        return 4 * i.n
    return 4

class Gap:
    def __init__(self, mf):
        self.mf = mf if isinstance(mf, Ins) else Ins(mf)
        self.sc, self.mem, self.val, self.post = [], [], [], []
        self.block = 0
    def used(self):
        return self.block + sum(map(cost, self.mem + self.val)) + 4 * max(0, len(self.sc) - 1)
    def put(self, i):
        i = i if isinstance(i, Ins) else Ins(i)
        (self.val if i.kind in ('valu', 'trans') else self.mem if i.kind in ('ds', 'vmem') else self.sc).append(i)
    def out(self):
        return [self.mf] + self.sc + self.mem + self.val + self.post

def rank(i):
    return 2 if i.kind in ('valu', 'trans') else 1 if i.kind in ('ds', 'vmem') else 0

def fill(gaps, ops, late=False):
    seq, dist = [], 0
    for o in ops:
        if isinstance(o, int):
            dist += o
        else:
            seq.append((o if isinstance(o, Ins) else Ins(o), dist)); dist = 0
    n, m = len(seq), len(gaps)
    glue = lambda o: o.op in ('s_addc_u32', 's_cselect_b32')
    INF = 10 ** 9
    best = [[None] * (m + 1) for _ in range(n + 1)]
    def go(i, g):
        if i == n:
            return 0, None
        if g >= m:
            return INF, None
        if best[i][g] is not None:
            return best[i][g]
        base, nsc = gaps[g].used(), len(gaps[g].sc)
        cands = [(go(i, g + 1)[0], 0)]
        u, last = base, -1
        for k in range(i, n):
            o, d = seq[k]
            r = rank(o)
            if k > i and (d or r < last):
                break
            if r == 0:
                u += 4 if nsc else 0
                nsc += 1
            else:
                u += cost(o)
            last = r
            if k + 1 < n and glue(seq[k + 1][0]):
                continue
            step = max(1, seq[k + 1][1]) if k + 1 < n else 1
            over = max(0, u - 8) - max(0, base - 8)
            cands.append((over + go(k + 1, g + step)[0], k + 1 - i))
        c = min(cands, key=lambda x: (x[0], x[1] if late else -x[1]))
        best[i][g] = c
        return c
    sys.setrecursionlimit(100000)
    g = seq[0][1] if n else 0
    total = go(0, g)[0]
    assert total < INF, "cannot fill"
    i = 0
    while i < n:
        k = go(i, g)[1]
        for o, _ in seq[i:i + k]:
            gaps[g].put(o)
        i += k
        g += max(1, seq[i][1]) if (k and i < n) else 1
    return total

def flat(gaps):
    s = Seg()
    for g in gaps:
        s.extend(g.out())
    return s

def stamp(s, level=1):
    if OPT['stamps'] >= level:
        s.e(f"s_memrealtime s[{sTmp+4}:{sTmp+5}]", f"s_memtime s[{sTmp+6}:{sTmp+7}]", "s_waitcnt lgkmcnt(0)",
            f"v_mov_b32 v{VST+1}, s{sTmp+4}", f"v_mov_b32 v{VST+2}, s{sTmp+6}",
            f"ds_write_b64 v{VST}, {vr(VST+1, 2)}", f"v_add_u32 v{VST}, 8, v{VST}", "s_waitcnt lgkmcnt(0)")

def item(i):
    if i >= 310:
        return (i - 310) // 2, 62 + (i & 1)
    return i % 5, i // 5

def k_reads(gb):
    par, slot = gb & 1, gb & 3
    return [I(f"ds_read_b128 {ar(AK(par, j, ks))}, v{VKA+ks} offset:{slot*8192 + j*4096}", tag=('K', gb), use=('K', gb, slot))
            for j in range(2) for ks in range(4)]

def v_reads(gb):
    par, slot = gb & 1, gb & 3
    return [I(f"ds_read_b64_tr_b16 {ar(AV(par, db) + 2*u, 2)}, v{VVA+db} offset:{VBASE + slot*8192 + u*4096}",
              tag=('V', gb), use=('V', gb, slot)) for db in range(8) for u in range(2)]

def dma(gb, part):
    i, isv, slot = part >> 1, part & 1, gb & 3
    m0 = I(f"s_add_u32 m0, s{sWL}, {isv*VBASE + slot*8192 + i*4096}")
    ld = I(f"buffer_load_dwordx4 v{VDV if isv else VDK}, {sr(SV if isv else SK)}, s{sOff} offen{POL[OPT['kvpol']]} lds",
           tag=('D', gb), fill=('V' if isv else 'K', gb, slot, 2), m0=m0.text)
    adv = I(f"s_add_u32 s{sOff}, s{sOff}, 4096") if isv else None
    return m0, ld, adv

def qk(n):
    t, gb = item(n)
    return [f"v_mfma_f32_16x16x32_bf16 {vr(S(n)+4*j)}, {ar(AK(gb & 1, j, ks))}, {ar(AQ(t, ks))}, "
            f"{vr(NM(t)) if ks == 0 else vr(S(n)+4*j)}" for j in range(2) for ks in range(4)]

def pv(n):
    t, gb = item(n)
    return [f"v_mfma_f32_16x16x32_bf16 {vr(O(t, db))}, {vr(P(n))}, {ar(AV(gb & 1, db))}, {'0' if gb % 32 == 0 else vr(O(t, db))}"
            for db in range(8)]

def smf(n):
    a, b = item(n - 2)[0], item(n - 1)[0]
    assert a == b or b == (a + 1) % 5
    return f"v_smfmac_f32_16x16x64_bf16 {ar(AL((3 * a) % 5))}, {ar(AONE2 if a == b else AONE)}, {vr(P(n - 2), 8)}, v{VIDX}"

class St:
    def __init__(self, n):
        self.n = n
        a = qk(n + 1) if n + 1 <= LAST else []
        c = pv(n - 1) if n >= 1 else []
        ex = [f"v_exp_f32 v{S(n)+k}, v{S(n)+k}" for k in range(8)] if 0 <= n <= LAST else []
        cv = [f"v_cvt_pk_bf16_f32 v{P(n)+k}, v{S(n)+2*k}, v{S(n)+2*k+1}" for k in range(4)] if ex else []
        L = self.L = [Gap(m) for m in a + c]
        self.G = list(L)
        if len(L) == 16:
            for k in range(8):
                L[2 * k].put(ex[k])
            for k in range(4):
                L[4 * k + 3].put(cv[k])
            if n >= 2 and n % 2 == 0:
                self.G.insert(8, Gap(smf(n)))
        elif n == -1:
            L[7].post.append(Ins("s_nop 3"))
        elif n in (0, LAST):
            for g in range(8):
                if g >= 2 and g % 2 == 0:
                    L[g].put(cv[g // 2 - 1])
                L[g].put(ex[g])
            L[7].post += [Ins("s_nop 0"), Ins(cv[3]), Ins("s_nop 1")]
        else:
            self.G.insert(0, Gap(smf(n)))
    def frm(self, g):
        return self.G[self.G.index(self.L[g]):]
    def upto(self, g):
        return self.G[:self.G.index(self.L[g])]

VG = [5, 9, 13, 1]

def window(st, key, w=0, reserve=False):
    n, L = st.n, st.L
    gb, wi, vg = (n - 1) // 5, (n - 1) % 5, VG[w]
    rd = (k_reads(gb + 1) + v_reads(gb + 1))[5 * wi:5 * wi + 5]
    free = [g for g in (1, 5, 9) if g != vg]
    for g, r in zip(sorted([3, 7, 11, 15, free[0]]) if wi < 4 else sorted([3, 7] + free[:2]), rd):
        L[g].put(r)
    if wi < 4:
        m0, ld, adv = dma(gb + 4, wi)
        L[vg].put(ld)
        if wi < 3:
            L[vg + 1].put(dma(gb + 4, wi + 1)[0])
        if adv:
            L[vg + 2].put(adv)
    else:
        L[0].put(dma(gb + 5, 0)[0])
        L[14].put(W(key + ('bar',), vm={('D', gb + 2)}, ds={('K', gb + 1), ('V', gb + 1)}))
        L[15].put("s_barrier"); L[15].block = 4
        if reserve:
            L[vg].block = 8
    if wi == 2:
        L[15].put(W(key + ('k',), ds={('K', gb + 1)}))
    return st

def scale_ops(x, t, packed):
    r = []
    if packed:
        for k in range(4):
            r += [f"v_lshlrev_b32 v{t+2*k}, 16, v{x+k}", f"v_and_b32 v{t+2*k+1}, s{sMask}, v{x+k}"]
        r += [f"v_pk_mul_f32 {vr(t+2*k, 2)}, {vr(t+2*k, 2)}, {sr(sC, 2)}" for k in range(4)]
        r += [f"v_cvt_pk_bf16_f32 v{x+k}, v{t+2*k}, v{t+2*k+1}" for k in range(4)]
        return r
    for h in range(2):
        for k in range(2):
            r += [f"v_lshlrev_b32 v{t+2*k}, 16, v{x+2*h+k}", f"v_and_b32 v{t+2*k+1}, s{sMask}, v{x+2*h+k}"]
        r += [f"v_mul_f32 v{t+k}, s{sC}, v{t+k}" for k in range(4)]
        r += [f"v_cvt_pk_bf16_f32 v{x+2*h+k}, v{t+2*k}, v{t+2*k+1}" for k in range(2)]
    return r

def qb_load(i, c):
    return I(f"buffer_load_dwordx4 {vr(VX+4*c)}, v{VQG}, {sr(SQ)}, s{sCh} offen{POL[OPT['qpol']]}", tag=('QB', i))

def q_frag_reads(t, adr):
    return [I(f"ds_read_b128 {ar(AQ(t, ks))}, v{adr[ks]} offset:{4096*t}", tag=('Q', t)) for ks in range(4)]

def srd_rows(srd, ptr, p):
    a, b, c = sTmp, sTmp + 1, sTmp + 2
    return [f"s_xor_b32 s{b}, s{sHalf}, {p}", f"s_mul_i32 s{b}, s{b}, {320*256}",
            f"s_mul_i32 s{c}, s{sW}, {80*256}", f"s_add_u32 s{b}, s{b}, s{c}",
            f"s_add_u32 s{a}, s{sHead}, {p}", f"s_mul_i32 s{a}, s{a}, {HEADQ}", f"s_add_u32 s{a}, s{a}, s{b}",
            f"s_add_u32 s{srd}, s{ptr}, s{a}", f"s_addc_u32 s{srd+1}, s{ptr+1}, 0",
            f"s_sub_u32 s{b}, {HEADQ}, s{b}", f"s_min_u32 s{srd+2}, s{b}, {80*256}", f"s_mov_b32 s{srd+3}, 0x20000"]

def mref_mfma(t):
    return [f"v_mfma_f32_16x16x32_bf16 {vr(NM(t))}, {ar(AK(0, 0, ks))}, {ar(AQ(t, ks))}, {'0' if ks == 0 else vr(NM(t))}"
            for ks in range(4)]

def mref_valu(t):
    n = NM(t)
    r = [f"v_max3_f32 v{n}, v{n}, v{n+1}, v{n+2}", f"v_max_f32 v{n}, v{n}, v{n+3}"]
    for sw in ("v_permlane16_swap_b32", "v_permlane32_swap_b32"):
        r += [f"v_mov_b32 v{n+1}, v{n}", 2, f"{sw} v{n}, v{n+1}", f"v_max_f32 v{n}, v{n}, v{n+1}"]
    return r + [f"v_sub_f32 v{n+k}, {float(-OPT['beta'])}, v{n}" for k in (3, 2, 1, 0)]

VLS, VLW, VLR, VOW, VTR, VLT = VT, VT + 1, VT + 2, VT + 3, VT + 4, VT + 5
def RL(t): return VX + 4 * (t & 1)

def epi_setup():
    x = VLT
    return [f"v_and_b32 v{x}, 15, v{VLN}", f"v_lshrrev_b32 v{x+1}, 4, v{VLN}",
            f"s_add_u32 s{sTmp+3}, s{sStage}, 20480",
            f"v_lshl_add_u32 v{VLW}, v{x}, 2, s{sTmp+3}", f"v_lshl_add_u32 v{VLR}, v{x+1}, 4, s{sTmp+3}",
            f"v_lshl_add_u32 v{VOW}, v{x}, 3, s{sStage}", f"v_lshl_add_u32 v{VOW}, v{x+1}, 10, v{VOW}",
            f"v_lshl_add_u32 v{VTR}, v{x+1}, 8, s{sStage}", f"v_and_b32 v{x+1}, 3, v{VLN}",
            f"v_lshl_add_u32 v{VTR}, v{x+1}, 6, v{VTR}", f"v_lshrrev_b32 v{x}, 2, v{x}",
            f"v_lshl_add_u32 v{VTR}, v{x}, 3, v{VTR}"]

def l_ops(t, key, zero):
    x = VLT
    src = [AL(0) + 2 * t, AL(0) + 2 * t + 1, AL(0) + 2 * t + 10, AL(0) + 2 * t + 11]
    r = [f"v_accvgpr_read_b32 v{RL(t)+k}, a{src[k]}" for k in range(4)]
    r += [f"v_add_f32 v{x}, v{RL(t)}, v{RL(t)+1}", f"v_add_f32 v{x+1}, v{RL(t)+2}, v{RL(t)+3}",
          f"v_add_f32 v{x}, v{x}, v{x+1}", f"v_rcp_f32 v{x+1}, v{x}",
          f"v_mov_b32 v{VLS}, v{x}" if t == 0 else f"v_add_f32 v{VLS}, v{VLS}, v{x}",
          f"ds_write_b32 v{VLW}, v{x+1}", I(f"ds_read_b128 {vr(RL(t))}, v{VLR}", tag=key + ('RL', t))]
    if zero:
        r += [f"v_accvgpr_write_b32 a{a}, 0" for a in src]
    return r

def flag_ops(bit):
    return [f"v_cmp_ngt_f32 vcc, {f32(THR)}, v{VLS}", 2, "s_cmp_lg_u64 vcc, 0", f"s_cselect_b32 s{sTmp}, {bit}, 0",
            f"s_or_b32 s{sFlag}, s{sFlag}, s{sTmp}"]

def pk_burst(t):
    return [Ins(f"v_pk_mul_f32 {vr(O(t, db)+2*k, 2)}, {vr(O(t, db)+2*k, 2)}, {vr(RL(t)+2*k, 2)}")
            for db in range(8) for k in range(2)]

def cvt_write(t):
    r = []
    for u in range(4):
        for db in (2 * u, 2 * u + 1):
            b = O(t, db)
            r += [f"v_cvt_pk_bf16_f32 v{b+k}, v{b+2*k}, v{b+2*k+1}" for k in range(2)]
        r.append(f"ds_write2_b64 v{VOW}, {vr(O(t, 2*u), 2)}, {vr(O(t, 2*u+1), 2)} offset0:{32*u} offset1:{32*u+16}")
    return r + [f"v_add_u32 v{VOW}, 4096, v{VOW}"]

def prologue():
    s = Seg()
    T = VT
    if OPT['early']:
        s.e("s_memrealtime s[64:65]")
    s.e("s_load_dwordx4 s[4:7], s[0:1], 0", "s_load_dwordx4 s[8:11], s[0:1], 16")
    if OPT['stamps']:
        s.e(f"s_load_dwordx2 s[{sStamp}:{sStamp+1}], s[0:1], 40")
    s.e("s_cmp_ge_u32 s2, 256", "s_cbranch_scc1 L_end")
    Wv, L, Q16, G, R, X, Y = T, VLN, T + 2, T + 3, T + 4, T + 5, T + 6
    s.e(f"v_lshrrev_b32 v{Wv}, 6, v0", f"v_and_b32 v{L}, 63, v0", f"v_lshlrev_b32 v{VPF}, 7, v0",
        f"v_readfirstlane_b32 s{sW}, v{Wv}", f"s_getpc_b64 s[{sPC}:{sPC+1}]", "L_pc:",
        I(f"global_load_dword v{VPD}, v{VPF}, s[{sPC}:{sPC+1}]", tag='pf'))
    s.e(f"s_and_b32 s{sHead}, s2, 7", f"s_lshl_b32 s{sHead}, s{sHead}, 5",
        f"s_lshr_b32 s3, s2, 3", f"s_and_b32 s{sHalf}, s3, 1", f"s_and_b32 s3, s3, 30",
        f"s_add_u32 s{sHead}, s{sHead}, s3", f"s_lshl_b32 s{sWL}, s{sW}, 10")
    s.e(f"v_and_b32 v{Q16}, 15, v{L}", f"v_lshrrev_b32 v{G}, 4, v{L}",
        f"v_lshlrev_b32 v{X}, 2, v{G}", f"v_xor_b32 v{X}, v{Q16}, v{X}", f"v_lshlrev_b32 v{X}, 4, v{X}",
        f"v_lshl_add_u32 v{VQG}, v{G}, 8, v{X}",
        f"v_lshl_add_u32 v{R}, v{Wv}, 2, v{G}",
        f"v_xor_b32 v{X}, v{Q16}, v{R}", f"v_lshlrev_b32 v{X}, 4, v{X}", f"v_lshl_add_u32 v{VDK}, v{R}, 8, v{X}",
        f"v_and_b32 v{X}, 7, v{R}", f"v_lshlrev_b32 v{X}, 1, v{X}", f"v_xor_b32 v{X}, v{Q16}, v{X}",
        f"v_lshlrev_b32 v{X}, 4, v{X}", f"v_lshl_add_u32 v{VDV}, v{R}, 8, v{X}")
    s.e(f"s_mul_i32 s3, s{sHead}, {HEADK}", f"s_mov_b32 s{SK+2}, {2*HEADK}", f"s_mov_b32 s{SK+3}, 0x20000",
        f"s_mov_b32 s{SV+2}, {2*HEADK}", f"s_mov_b32 s{SV+3}, 0x20000", f"s_mov_b32 s{sOff}, 0")
    for t in range(NT):
        s.e(f"s_mov_b32 s{sT+t}, {4096*t}")
    rows = srd_rows(SQ, 4, 0)
    s.e(*rows[:7], *rows[9:])
    if OPT['stamps']:
        s.e(f"v_lshlrev_b32 v{VST}, 8, v{Wv}", f"v_add_u32 v{VST}, {STAMPS}, v{VST}")
    s.e("s_waitcnt lgkmcnt(0)", *rows[7:9])
    def blk(gb):
        for p in range(4):
            m0, ld, adv = dma(gb, p)
            s.e(m0, "s_nop 0", ld, adv)
    def qload(t):
        for c in range(4):
            s.e(I(f"buffer_load_dwordx4 {vr(80 + 16*t + 4*c)}, v{VQG}, {sr(SQ)}, s{sT+t} offen offset:{1024*c}{POL[OPT['qpol']]}",
                  tag=('QA', t)))
    adr = [VQR, VX + 1, VX + 2, VX + 3]
    def qwait(t):
        s.e(W(('pro', 'q', t), vm={('QA', t)}))
    def qprep(t):
        for c in range(4):
            s.e(*scale_ops(80 + 16 * t + 4 * c, VX + 4, True))
        for c in range(4):
            s.e(f"ds_write_b128 v{VSL}, {vr(80 + 16*t + 4*c)} offset:{4096*t + 1024*c}")
        s.e(*q_frag_reads(t, adr))
    def mref(t):
        s.e(W(('pro', 'm', t), ds={('Q', t), ('K', 0)}), *mref_mfma(t), "s_nop 7", *mref_valu(t), "s_nop 1")
    qload(0)
    s.e(f"s_add_u32 s{SK}, s6, s3", f"s_addc_u32 s{SK+1}, s7, 0", f"s_add_u32 s{SV}, s8, s3", f"s_addc_u32 s{SV+1}, s9, 0")
    blk(0); qload(1)
    stamp(s)
    s.e(f"v_add_u32 v{VPF}, L_trans-L_pc, v{VPF}", f"v_min_u32 v{VPF}, L_code_end-L_pc-4, v{VPF}")
    s.e(f"s_mov_b32 s{sFlag}, 0", f"s_mov_b32 s{sMask}, 0xffff0000",
        f"s_mov_b32 s{sC}, {f32(math.log2(math.e) / math.sqrt(128.0))}", f"s_mov_b32 s{sC+1}, s{sC}",
        f"s_mul_i32 s{sStage}, s{sW}, {STW}", f"s_add_u32 s{sStage}, s{sStage}, {STAGE}")
    for ks in range(4):
        s.e(f"v_add_u32 v{X}, {4*ks}, v{G}", f"v_xor_b32 v{X}, v{X}, v{Q16}", f"v_lshlrev_b32 v{X}, 4, v{X}",
            f"v_lshl_add_u32 v{VKA+ks}, v{Q16}, 8, v{X}")
    s.e(f"v_lshrrev_b32 v{X}, 2, v{L}", f"v_and_b32 v{Y}, 3, v{L}",
        f"v_lshlrev_b32 v{R}, 4, v{X}", f"v_lshl_add_u32 v{VOS}, v{Y}, 8, v{R}",
        f"v_lshlrev_b32 v{R}, 4, v{G}", f"v_lshl_add_u32 v{R}, v{Q16}, 8, v{R}", f"v_lshl_add_u32 v{R}, v{Y}, 6, v{R}",
        f"v_add_u32 v{VQR}, s{sStage}, v{R}", f"v_lshl_add_u32 v{VSL}, v{L}, 4, s{sStage}",
        f"v_lshlrev_b32 v{Y}, 3, v{Y}", f"v_lshl_add_u32 v{Y}, v{X}, 8, v{Y}", f"v_and_b32 v{X}, 7, v{X}")
    for db in range(8):
        s.e(f"v_xor_b32 v{R}, {db}, v{X}", f"v_lshl_add_u32 v{VVA+db}, v{R}, 5, v{Y}")
    s.e(f"v_and_b32 v{X}, 1, v{L}", f"v_mul_u32_u24 v{X}, 0xaaaa, v{X}", f"v_add_u32 v{VIDX}, 0x4444, v{X}",
        f"v_bfe_u32 v{X}, v{L}, 1, 1", f"v_lshrrev_b32 v{Y}, 5, v{L}", f"v_xor_b32 v{Y}, v{X}, v{Y}",
        f"v_add_u32 v{X}, -1, v{X}", f"v_add_u32 v{Y}, -1, v{Y}",
        f"v_and_b32 v{X}, 0x3f803f80, v{X}", f"v_and_b32 v{Y}, 0x3f803f80, v{Y}")
    for r in range(4):
        s.e(f"v_accvgpr_write_b32 a{AONE+r}, v{Y}", f"v_accvgpr_write_b32 a{AONE2+r}, v{X}")
    for k in range(20):
        s.e(f"v_accvgpr_write_b32 a{AL(0)+k}, 0")
    for ks in range(1, 4):
        s.e(f"v_xor_b32 v{adr[ks]}, {64*ks}, v{VQR}")
    qwait(0); stamp(s); qload(2); qprep(0)
    s.e(W(('pro', 'b0'), vm={('D', 0)}), "s_barrier", *k_reads(0))
    qload(3)
    s.e(*v_reads(0))
    mref(0)
    s.extend(flat(St(-1).G))
    qwait(1); qload(4); qprep(1); mref(1)
    s.extend(flat(St(0).G))
    qwait(2); blk(1); qprep(2); mref(2)
    s.extend(flat(St(1).G))
    qwait(3); blk(2); qprep(3); mref(3)
    s.extend(flat(St(2).G))
    qwait(4); blk(3); qprep(4); mref(4)
    stamp(s)
    s.e(W(('pro', 'b1'), vm={('D', 1)}), "s_barrier")
    st = {n: St(n) for n in range(3, 16)}
    fill(st[3].upto(11), k_reads(1))
    st[3].L[15].put(W(('pro', 'k1'), ds={('K', 1)}))
    d = [dma(4, p) for p in range(4)]
    for p, (n, g) in enumerate(((3, 13), (4, 5), (4, 13), (5, 5))):
        st[n].L[g - 3].put(d[p][0]); st[n].L[g].put(d[p][1])
        if d[p][2]:
            st[n].L[g + 1].put(d[p][2])
    st[5].L[8].put(dma(5, 0)[0])
    st[5].L[14].put(W(('pro', 'b2'), vm={('D', 2)}, ds={('V', 1)}))
    st[5].L[15].put("s_barrier"); st[5].L[15].block = 4
    fill(st[3].frm(11) + st[4].G + st[5].upto(10), v_reads(1))
    for n in range(6, 16):
        window(st[n], ('peel', n))
    G = sum((st[n].G for n in range(6, 16)), [])
    adv = f"s_add_u32 s{sCh}, s{sCh}, 1024"
    fill(G, srd_rows(SQ, 4, 1) + [f"s_mov_b32 s{sCh}, 0", f"s_mov_b32 s{sCnt}, 7", 4,
                                  qb_load(0, 0), adv, 12, qb_load(1, 1), adv, 12, qb_load(2, 2)])
    for n in range(3, 16):
        s.extend(flat(st[n].G))
    return s

def dispatch(name):
    s = Seg()
    for w in range(1, OPT['waves']):
        s.e(f"s_cmp_eq_u32 s{sW}, {w}", f"s_cbranch_scc1 L_{name}{w}")
    return s

def body(name, n0, w, extras):
    st = [window(St(n0 + k), (name, w, k), w, reserve=(k > 5)) for k in range(20)]
    st[4].L[VG[w]].put(I(f"global_load_dword v{VPD}, v{VPF}, s[{sPC}:{sPC+1}]", tag='pf'))
    st[19].L[10].put(f"s_sub_u32 s{sCnt}, s{sCnt}, 1")
    st[19].L[12].put(f"s_cmp_lg_u32 s{sCnt}, 0")
    for c, (a, b) in enumerate(((0, 6), (6, 12), (12, 18))):
        ops, slot = extras(c)
        cap = fill(st[a].frm(VG[w]) + sum((x.G for x in st[a + 1:b]), []) + st[b].upto(VG[w]), ops)
        assert cap <= 12, cap
        g = st[9 + 5 * c].L[VG[w]]
        g.block = 0
        g.put(slot)
        fill(st[7 + 5 * c].G, [f"s_add_u32 s{sCh}, s{sCh}, 1024"])
    s = Seg()
    stamp(s, 2)
    s.extend(flat(sum((x.G for x in st), [])))
    s.e(f"s_cbranch_scc1 L_{name}{w}")
    return s

def body_a(trip, w):
    def extras(c):
        i = 3 * trip + c
        ops = [W(('A', w, 'q', c), vm={('QB', i)})] + scale_ops(VX + 4 * c, VT, False)
        ops += [f"ds_write_b128 v{VSL}, {vr(VX+4*c)} offset:{1024*c}"]
        ops += [f"v_add_u32 v{VSL}, 3072, v{VSL}"] if c == 2 else []
        return ops, qb_load(i + 3, c)
    return body('A', 16 + 20 * trip, w, extras)

def body_b(trip, w):
    def extras(c):
        i = 3 * trip + c
        ops = [I(f"ds_read_b64_tr_b16 {vr(VX+4*c+2*h, 2)}, v{VTR} offset:{1024*c + 32*h}", tag=('OA', i)) for h in range(2)]
        ops += [16, W(('B', w, 'o', c), ds={('OA', i)})]
        ops += [f"v_add_u32 v{VTR}, 3072, v{VTR}"] if c == 2 else []
        return ops, I(f"buffer_store_dwordx4 {vr(VX+4*c)}, v{VOS}, {sr(SO)}, s{sCh} offen{POL[OPT['oapol']]}")
    return body('B', 166 + 20 * trip, w, extras)

def transition():
    s = Seg()
    stamp(s)
    st = {n: window(St(n), ('tr', n)) for n in range(156, 166)}
    adr = [VQR, VQG, VSL, VPF]
    st[156].L[14].put(W(('tr', 'qb0'), vm={('QB', 21)}))
    st[158].L[14].put(W(('tr', 'qb1'), vm={('QB', 22)}))
    fill(st[156].G, [f"v_xor_b32 v{adr[ks]}, {64*ks}, v{VQR}" for ks in range(1, 4)] +
         q_frag_reads(0, adr) + q_frag_reads(1, adr))
    fill(st[156].G, epi_setup())
    for t in range(2, 5):
        fill(st[155 + t].upto(10), q_frag_reads(t, adr))
    for t in range(NT):
        x = st[157 + t]
        x.L[13].put(W(('tr', 'mq', t), ds={('Q', t), ('K', 32)}))
        x.G += [Gap(m) for m in mref_mfma(t)]
    for t in range(NT):
        fill(st[158 + t].L[4:15], mref_valu(t))
    lstep = [157, 159, 160, 161, 162]
    for t in range(NT):
        fill(st[lstep[t]].G[:-6], l_ops(t, ('tr',), True))
    pstep = [157, 159, 160, 162, 163]
    for t in range(NT):
        g = st[pstep[t]].G[-1]
        g.sc.append(W(('tr', 'rl', t), ds={('tr', 'RL', t)}))
        g.block -= 8
        g.post += pk_burst(t)
    win = [st[158].G + st[159].G, st[160].G + st[161].upto(6), st[161].frm(6) + st[162].G,
           st[163].G + st[164].upto(4), st[164].frm(4) + st[165].upto(6)]
    for t in range(NT):
        fill(win[t], cvt_write(t))
    fill(st[163].G + st[164].G, srd_rows(SO, 10, 0) + [f"s_mov_b32 s{sCh}, -1024", f"s_mov_b32 s{sCnt}, 7"])
    fill(st[165].frm(6)[:-3], flag_ops(1))
    fill(st[165].frm(6), [f"v_lshlrev_b32 v{VPF}, 7, v{VLN}", f"v_add_u32 v{VPF}, L_final-L_pc, v{VPF}",
                          f"v_min_u32 v{VPF}, L_code_end-L_pc-4, v{VPF}"])
    for n in range(156, 166):
        s.extend(flat(st[n].G))
    stamp(s)
    return s

def finale():
    s = Seg()
    stamp(s)
    st = {n: St(n) for n in range(306, 321)}
    fill(st[306].G + st[307].G + st[308].upto(6), k_reads(62) + v_reads(62))
    st[308].L[6].put(W(('fin', 'b'), vm={('D', 63)}))
    st[308].L[7].put("s_barrier"); st[308].L[7].block = 4
    st[308].L[15].put(W(('fin', 'k62'), ds={('K', 62)}))
    fill(st[308].frm(8) + st[309].upto(10), k_reads(63))
    st[309].L[15].put(W(('fin', 'k63'), ds={('K', 63)}))
    v63 = v_reads(63)
    for g, k in ((9, 2), (11, 1), (13, 2), (15, 1)):
        for _ in range(k):
            st[310].L[g].put(v63.pop(0))
    fill(st[311].G, v63)
    st[312].L[6].put(W(('fin', 'v63'), ds={('V', 63)}))
    fill(st[309].frm(10) + st[310].upto(8), epi_setup())
    fill(st[306].G + st[307].G, srd_rows(SO, 10, 1))
    st[318].L[15].post.append(Ins("s_nop 1"))
    def readback(t):
        return [I(f"ds_read_b64_tr_b16 {vr(O(t, c)+2*h, 2)}, v{VTR} offset:{4096*t + 1024*c + 32*h}", tag=('OB', t, c))
                for c in range(4) for h in range(2)]
    def stores(t, gapn):
        r = []
        for c in range(4):
            pol = POL[OPT['olast'] if t == 4 else OPT['opol']]
            r += [W(('fin', 'o', t, c), ds={('OB', t, c)}),
                  f"buffer_store_dwordx4 {vr(O(t, c))}, v{VOS}, {sr(SO)}, s{sT+t} offen offset:{1024*c}{pol}"]
            if gapn:
                r.append(gapn)
        return r
    for t in range(4):
        n = 312 + 2 * t
        nxt = st[n + 1]
        cut = 8 if t < 3 else 5
        fill(st[n].frm(14) + nxt.G[:cut - 3], l_ops(t, ('fin',), False))
        g = nxt.G[cut]
        g.sc.append(W(('fin', 'rl', t), ds={('fin', 'RL', t)}))
        g.block -= 8
        g.post += pk_burst(t)
        if t < 3:
            fill(nxt.G[cut + 1:] + st[n + 2].upto(13), cvt_write(t) + readback(t))
            fill(st[n + 2].frm(13) + st[n + 3].G, [2] + stores(t, 2))
        else:
            fill(nxt.G[cut + 1:] + st[320].G[:5], cvt_write(t) + readback(t))
    fill(st[320].G[5:], l_ops(4, ('fin',), False))
    for n in range(306, 321):
        s.extend(flat(st[n].G))
    stamp(s)
    s.e(*stores(3, 0), W(('fin', 'rl', 4), ds={('fin', 'RL', 4)}), *pk_burst(4), *cvt_write(4)[:-1], *readback(4),
        *flag_ops(2), *stores(4, 0))
    stamp(s)
    if OPT['stamps']:
        s.e("s_waitcnt vmcnt(0)")
        stamp(s)
        s.e(f"v_lshlrev_b32 v0, 2, v{VLN}",
            f"s_lshl_b32 s3, s{sW}, 8", "v_add_u32 v0, s3, v0", f"v_add_u32 v1, {STAMPS}, v0",
            "ds_read_b32 v2, v1", "s_lshl_b32 s3, s2, 10", "v_add_u32 v0, s3, v0", "s_waitcnt lgkmcnt(0)",
            f"global_store_dword v0, v2, s[{sStamp}:{sStamp+1}]")
    if OPT['probe'] >= 0:
        a, b = OPT['pa'], OPT['pb']
        s.e(f"v_mov_b32 v4, s{sW}", "v_lshlrev_b32 v0, 8, v4", f"v_add_u32 v0, {STAMPS}, v0",
            "ds_read_b64 v[2:3], v0", f"ds_read_b64 v[4:5], v0 offset:{8*a}", f"ds_read_b64 v[6:7], v0 offset:{8*b}",
            "s_waitcnt lgkmcnt(0)", "v_sub_u32 v6, v6, v4", "v_sub_u32 v7, v7, v5")
        s.e(["v_mov_b32 v6, 5000", "v_lshlrev_b32 v6, 2, v6", "v_lshrrev_b32 v6, 3, v7"][OPT['probe']])
        s.e("v_add_u32 v6, 10000, v6", "s_nop 1", "v_readfirstlane_b32 s60, v6", "v_readfirstlane_b32 s61, v2", "s_nop 3",
            "s_mov_b32 s61, s64" if OPT['early'] else "s_nop 0",
            "L_spin:", "s_memrealtime s[62:63]", "s_waitcnt lgkmcnt(0)", "s_sub_u32 s62, s62, s61",
            "s_cmp_lt_u32 s62, s60", "s_cbranch_scc1 L_spin")
    s.e("L_end:", "s_endpgm")
    return s

def est_cycles(seq):
    tot, cur, nsc, inm = 0, 0, 0, False
    for i in seq:
        if i.kind == 'pseudo':
            continue
        if i.kind == 'mfma':
            tot += max(16, cur) if inm else cur
            cur, nsc, inm = 8, 0, True
        elif rank(i) == 0:
            nsc += 1
            cur += cost(i) - (4 if (inm and nsc == 1 and cur == 8) else 0)
        else:
            if i.op.startswith('v_pk') and inm:
                cur = max(cur, 24)
            cur += cost(i)
    return tot + (max(16, cur) if inm else cur)

def check_m0(trace):
    cur, probs = None, []
    for i in trace:
        if 'm0' in i.wr:
            cur = i.text
        if hasattr(i, 'm0') and i.m0 != cur:
            probs.append(f"m0 mismatch at {i.fill}: have '{cur}' want '{i.m0}'")
    return probs

def build():
    nw = OPT['waves']
    pro, trn, fin = prologue(), transition(), finale()
    A = [[body_a(k, w) for k in range(7)] for w in range(nw)]
    B = [[body_b(k, w) for k in range(7)] for w in range(nw)]
    da, db = dispatch('A'), dispatch('B')
    traces = [Seg(pro + da + sum(A[w], []) + trn + db + sum(B[w], []) + fin) for w in range(nw)]
    res = {}
    mn = lambda x, y: y if x is None else (x if y is None else min(x, y))
    for tr in traces:
        for k, (a, b) in resolve_waits(tr).items():
            pa, pb = res.get(k, (None, None))
            res[k] = (mn(pa, a), mn(pb, b))
    probs = []
    for w, tr in enumerate(traces):
        apply_waits(tr, res)
        for X in (A[w], B[w]):
            for k in range(1, 7):
                assert [i.text for i in X[k]] == [i.text for i in X[0]], "loop body not periodic"
        probs += check(tr, "trace") + check_ring(tr) + check_m0(tr)
    probs = [p for p in probs if 'global_load_dword' not in p.split('->')[-1]]
    for p in sorted(set(probs))[:40]:
        print(p, file=sys.stderr)
    if probs:
        print(len(probs), "problems", file=sys.stderr)
    print("est cycles: pro", est_cycles(pro), "A", [est_cycles(A[w][0]) for w in range(nw)], "trn", est_cycles(trn),
          "B", [est_cycles(B[w][0]) for w in range(nw)], "fin", est_cycles(fin), "total", est_cycles(traces[0]), file=sys.stderr)
    text = Seg(pro + da)
    for name, X, cont, nxt in (('A', A, 'L_trans', trn + db), ('B', B, 'L_final', fin)):
        for w in range(nw):
            if w:
                text.e(".p2align 6")
            text.e(f"L_{name}{w}:"); text.extend(X[w][0])
            if w < nw - 1:
                text.e(f"s_branch {cont}")
        text.e(f"{cont}:"); text.extend(nxt)
    hdr = open("standalone__mha_softmax__near_ridge.s.ref").read().split("; Override launch")[0]
    out = hdr + "; @launch grid=(256,1,1) block=(256,1,1) lds=163840\n"
    out += f'.amdgcn_target "amdgcn-amd-amdhsa--gfx950"\n.text\n.globl {KN}\n.p2align 8\n.type {KN},@function\n{KN}:\n'
    for i in text:
        out += ("" if i.kind == 'pseudo' else "    ") + i.text + "\n"
    out += ".p2align 7\n" + (".fill 8192, 4, 0xbf810000\n" if nw == 1 else "") + "L_code_end:\n"
    out += f'''.section .rodata,"a"
.p2align 6
.amdhsa_kernel {KN}
  .amdhsa_next_free_vgpr 512
  .amdhsa_next_free_sgpr 96
  .amdhsa_accum_offset 256
  .amdhsa_group_segment_fixed_size 0
  .amdhsa_kernarg_size 48
  .amdhsa_user_sgpr_count 2
  .amdhsa_user_sgpr_kernarg_segment_ptr 1
  .amdhsa_system_sgpr_workgroup_id_x 1
.end_amdhsa_kernel
'''
    return out

if __name__ == "__main__":
    path = sys.argv[1]
    for a in sys.argv[2:]:
        k, v = a.split("=")
        assert k in OPT, k
        OPT[k] = int(v)
    open(path, "w").write(build())
```

```python
import re

def regs_of(tok):
    tok = tok.strip()
    m = re.fullmatch(r'-?(?:abs\()?([vas])(\d+)\)?', tok)
    if m:
        return [m.group(1) + m.group(2)]
    m = re.fullmatch(r'-?([vas])\[(\d+):(\d+)\]', tok)
    if m:
        return [m.group(1) + str(i) for i in range(int(m.group(2)), int(m.group(3)) + 1)]
    if tok in ('vcc', 'm0', 'exec'):
        return [tok]
    return []

TRANS = ('v_exp_f32', 'v_log_f32', 'v_rcp_f32', 'v_rsq_f32', 'v_sqrt_f32')

class Ins:
    def __init__(self, text):
        self.text = text
        t = text.split(';')[0].strip()
        self.op = t.split()[0] if t else ''
        self.rd, self.wr = set(), set()
        self.srcc = []
        self.dst = []
        self.ab = set()
        self.kind = 'other'
        if not t or t.endswith(':') or t.startswith('.'):
            self.kind = 'pseudo'
            return
        rest = t[len(self.op):].strip()
        ops = [o.strip() for o in rest.split(',')] if rest else []
        if ops:
            last = ops[-1].split()
            ops[-1] = last[0] if last else ''
            self.mods = last[1:]
        else:
            self.mods = []
        R = [regs_of(o) for o in ops]
        op = self.op
        if op.startswith('v_mfma'):
            self.kind = 'mfma'
            self.dst = R[0]; self.wr = set(R[0]); self.ab = set(R[1] + R[2]); self.srcc = R[3]
            self.rd = self.ab | set(R[3])
        elif op.startswith('v_smfmac'):
            self.kind = 'mfma'
            self.dst = R[0]; self.wr = set(R[0]); self.ab = set(R[1] + R[2] + R[3]); self.srcc = R[0]
            self.rd = self.ab | set(R[0])
        elif op.startswith('v_permlane'):
            self.kind = 'valu'; self.wr = set(R[0] + R[1]); self.rd = set(R[0] + R[1])
        elif op.startswith('v_cmp'):
            self.kind = 'valu'; self.wr = set(R[0]); self.rd = set(sum(R[1:], []))
        elif op.startswith('v_'):
            self.kind = 'trans' if op.replace('_e32', '').replace('_e64', '') in TRANS else 'valu'
            self.wr = set(R[0]); self.rd = set(sum(R[1:], []))
            if op.startswith('v_fmac') or op.startswith('v_writelane'):
                self.rd |= set(R[0])
        elif op.startswith('ds_read'):
            self.kind = 'ds'; self.wr = set(R[0]); self.rd = set(R[1])
        elif op.startswith('ds_write') or op.startswith('ds_inc'):
            self.kind = 'ds'; self.rd = set(sum(R, []))
        elif op.startswith('ds_bpermute') or op.startswith('ds_swizzle'):
            self.kind = 'ds'; self.wr = set(R[0]); self.rd = set(sum(R[1:], []))
        elif op.startswith('buffer_load') or op.startswith('global_load'):
            self.kind = 'vmem'
            if 'lds' in self.mods or '_lds_' in op:
                self.rd = set(sum(R, [])) | {'m0'}
            else:
                self.wr = set(R[0]); self.rd = set(sum(R[1:], []))
        elif op.startswith('buffer_store') or op.startswith('global_store'):
            self.kind = 'vmem'; self.rd = set(sum(R, []))
            self.sdata = R[0] if op.startswith('buffer') else R[1]
        elif op == 's_waitcnt':
            self.kind = 'wait'
            m = re.search(r'vmcnt\((\d+)\)', t); self.vm = int(m.group(1)) if m else None
            m = re.search(r'lgkmcnt\((\d+)\)', t); self.lgkm = int(m.group(1)) if m else None
        elif op == 's_nop':
            self.kind = 'nop'; self.n = int(ops[0]) + 1
        elif op.startswith('s_load') or op in ('s_memtime', 's_memrealtime'):
            self.kind = 'smem'; self.wr = set(R[0]); self.rd = set(sum(R[1:], []))
        elif op.startswith('s_cmp') or op.startswith('s_bitcmp'):
            self.kind = 'salu'; self.rd = set(sum(R, []))
        elif op.startswith('s_cbranch') or op in ('s_branch', 's_barrier', 's_endpgm', 's_setprio'):
            self.kind = 'ctl'
        elif op.startswith('s_'):
            self.kind = 'salu'; self.wr = set(R[0]); self.rd = set(sum(R[1:], []))
            if op.startswith('s_addk') or op.startswith('s_bitset'):
                self.rd |= set(R[0])
        else:
            raise ValueError("unknown instruction " + text)

def check(trace, name=""):
    probs = []
    pos = 0
    lastw = {}
    lastc = {}
    laststore = {}
    ds_out, vm_out = [], []
    smem_out = []
    sccw = None
    for ins in trace:
        k = ins.kind
        if k == 'pseudo':
            continue
        if ins.op in ('s_addc_u32', 's_subb_u32'):
            d = int(next(iter(ins.wr))[1:])
            if sccw is None or sccw.wr != {f"s{d-1}"}:
                probs.append(f"{name}: carry for '{ins.text}' comes from '{sccw.text if sccw else None}'")
        if ins.op.startswith('s_cselect') or ins.op.startswith('s_cbranch_scc'):
            if sccw is None or not (sccw.op.startswith('s_cmp') or sccw.op.startswith('s_bitcmp')):
                probs.append(f"{name}: SCC for '{ins.text}' comes from '{sccw.text if sccw else None}'")
        if k == 'salu' and not any(ins.op.startswith(x) for x in ('s_mov', 's_mul', 's_cselect', 's_getpc', 's_getreg')):
            sccw = ins
        def need(r, n, why, tab=lastw):
            p = tab.get(r)
            if p is not None and pos - p[0] - 1 < n:
                probs.append(f"{name}: {why}: '{p[1].text}' -> '{ins.text}' has {pos - p[0] - 1} < {n}")
        touched = ins.rd | ins.wr
        for q, nm in ((ds_out, 'lgkm'), (vm_out, 'vm'), (smem_out, 'smem')):
            for o in q:
                if o.wr & touched:
                    probs.append(f"{name}: unwaited {nm} result: '{o.text}' -> '{ins.text}'")
        for r in ins.rd:
            p = lastw.get(r)
            if not p:
                continue
            w = p[1]
            if w.kind == 'mfma':
                big = 12 if ('smfmac' in w.op or '32x32' in w.op) else 8
                if k == 'mfma':
                    if r in ins.ab:
                        need(r, big, "mfma D -> mfma A/B")
                    elif ins.srcc != w.dst or ins.op != w.op:
                        need(r, big - 2, "mfma D -> mfma C overlap")
                elif k in ('valu', 'trans', 'ds', 'vmem'):
                    need(r, big, "mfma D -> read")
            elif w.kind in ('valu', 'trans'):
                if r[0] in 'va' and r != 'vcc':
                    if k == 'mfma':
                        need(r, 2, "valu -> mfma")
                    if ins.op.startswith('v_permlane') or 'dpp' in ins.op:
                        need(r, 2, "valu -> permlane/dpp")
                    if ins.op.startswith('v_readfirstlane') or ins.op.startswith('v_readlane'):
                        need(r, 1, "valu -> readlane")
                    if w.kind == 'trans' and k == 'valu':
                        need(r, 1, "trans -> valu")
                else:
                    if k == 'vmem':
                        need(r, 5, "valu sgpr -> vmem")
                    if k in ('valu', 'trans'):
                        need(r, 2, "valu sgpr -> valu")
                    if k == 'salu':
                        need(r, 1, "valu sgpr -> salu")
            elif w.kind == 'salu' and r == 'm0' and k == 'vmem':
                need(r, 1, "m0 -> lds dma")
        for r in ins.wr:
            p = lastw.get(r)
            if p and p[1].kind == 'mfma':
                big = 12 if ('smfmac' in p[1].op or '32x32' in p[1].op) else 8
                if k in ('valu', 'trans', 'ds', 'vmem'):
                    need(r, big, "mfma D -> WAW")
                elif k == 'mfma' and ins.srcc != p[1].dst:
                    need(r, big - 2, "mfma D -> mfma WAW")
            if k in ('valu', 'trans'):
                need(r, 7, "mfma C read -> valu WAR", lastc)
                need(r, 2, "store data WAR", laststore)
            elif k in ('ds', 'vmem', 'mfma'):
                need(r, 1, "store data WAR", laststore)
        if k == 'wait':
            if ins.vm is not None:
                while len(vm_out) > ins.vm:
                    vm_out.pop(0)
            if ins.lgkm is not None:
                if smem_out and ins.lgkm != 0:
                    probs.append(f"{name}: counted lgkmcnt with SMEM outstanding: {ins.text}")
                if ins.lgkm == 0:
                    smem_out = []
                while len(ds_out) > ins.lgkm:
                    ds_out.pop(0)
        if k == 'ds':
            ds_out.append(ins)
        if k == 'vmem':
            vm_out.append(ins)
            if len(vm_out) > 63:
                probs.append(f"{name}: more than 63 vmem outstanding at {ins.text}")
            if hasattr(ins, 'sdata'):
                for r in ins.sdata:
                    laststore[r] = (pos, ins)
        if k == 'smem':
            smem_out.append(ins)
        for r in ins.wr:
            lastw[r] = (pos, ins)
        if k == 'mfma':
            for r in ins.srcc:
                lastc[r] = (pos, ins)
        pos += ins.n if k == 'nop' else 1
    return probs


def resolve_waits(trace):
    res = {}
    vm, ds = [], []
    for ins in trace:
        if ins.kind == 'vmem':
            vm.append(getattr(ins, 'tag', None))
        elif ins.kind == 'ds':
            ds.append(getattr(ins, 'tag', None))
        elif ins.kind == 'wait' and hasattr(ins, 'key'):
            def cnt(q, tags, cap):
                if tags is None:
                    return None
                if tags == 'all':
                    return 0
                last = max((i for i, t in enumerate(q) if t in tags), default=None)
                if last is None:
                    return None
                return min(cap, len(q) - 1 - last)
            a, b = cnt(vm, ins.need_vm, 63), cnt(ds, ins.need_ds, 15)
            pa, pb = res.get(ins.key, (None, None))
            mn = lambda x, y: y if x is None else (x if y is None else min(x, y))
            res[ins.key] = (mn(pa, a), mn(pb, b))
    return res

def apply_waits(seq, res):
    for ins in seq:
        if ins.kind == 'wait' and hasattr(ins, 'key'):
            a, b = res[ins.key]
            ins.vm, ins.lgkm = a, b
            parts = ([f"vmcnt({a})"] if a is not None else []) + ([f"lgkmcnt({b})"] if b is not None else [])
            ins.text = "s_waitcnt " + " ".join(parts) if parts else "s_nop 0"

def check_ring(trace):
    probs = []
    vm_out, ds_out = [], []
    landed, visible = set(), set()
    issued = {}
    pending_reads = {}
    reads_since_bar = set()
    holder = {}
    phase, pend_vis, pend_reads = 'check', set(), set()
    for ins in trace:
        if ins.kind == 'vmem':
            vm_out.append(ins)
            f = getattr(ins, 'fill', None)
            if f:
                slot = (f[0], f[2])
                old = holder.get(slot)
                if old is not None and old != f[1] and (f[0], old) in reads_since_bar:
                    probs.append(f"DMA {f} overwrites {old} with reads not fenced by a barrier")
                holder[slot] = f[1]
        elif ins.kind == 'ds':
            ds_out.append(ins)
            u = getattr(ins, 'use', None)
            if u:
                if (u[0], u[1]) not in visible:
                    probs.append(f"read of {u} before it is visible: {ins.text}")
                if holder.get((u[0], u[2])) != u[1]:
                    probs.append(f"read of {u} but slot holds {holder.get((u[0], u[2]))}")
                reads_since_bar.add((u[0], u[1]))
        elif ins.kind == 'wait':
            if ins.vm is not None:
                while len(vm_out) > ins.vm:
                    o = vm_out.pop(0)
                    f = getattr(o, 'fill', None)
                    if f:
                        issued[(f[0], f[1])] = issued.get((f[0], f[1]), 0) + 1
                        if issued[(f[0], f[1])] == f[3]:
                            landed.add((f[0], f[1]))
            if ins.lgkm is not None:
                while len(ds_out) > ins.lgkm:
                    ds_out.pop(0)
        if ins.op == 's_barrier':
            visible |= landed
            reads_since_bar = {(o.use[0], o.use[1]) for o in ds_out if hasattr(o, 'use')}
        sync = getattr(ins, 'sync', None)
        if sync:
            want = {'signal': 'check', 'poll': 'signal', 'cmp': 'poll', 'check': 'cmp'}[sync]
            if want != phase:
                probs.append(f"sync order: {sync} after {phase}")
            phase = sync
        if sync == 'signal':
            pend_vis = set(landed)
            pend_reads = {(o.use[0], o.use[1]) for o in ds_out if hasattr(o, 'use')}
        elif sync == 'check':
            visible |= pend_vis
            reads_since_bar = set(pend_reads)
        if ins.kind == 'ds' and hasattr(ins, 'use'):
            pend_reads.add((ins.use[0], ins.use[1]))
    return probs
```

```python
import sys, struct, math
from asmlib import Ins, check, resolve_waits, apply_waits, check_ring

KN = "standalone__mha_softmax__near_ridge_kernel"
NT = 5
OPT = dict(cnt=0, wsel=1, qw=32, pollgap=7, force=0, nobar=0, nodma=0, noex=0, nord=0, rot=0, noqb=0, nopf=0, stamps=0, early=0, probe=-1, pa=0, pb=0, kvpol=0, qpol=1, opol=1, olast=1, oapol=4, waves=1, beta=4)
POL = ['', ' nt', ' sc1', ' sc1 nt', ' sc0 sc1', ' sc0 sc1 nt', ' sc0', ' sc0 nt']

def O(t, db): return 32 * t + 4 * db
S0, P0, NM0, VKA, VVA = 160, 176, 192, 212, 216
VDK, VDV, VIDX, VQG, VSL, VOS, VQR, VLN = 224, 225, 226, 227, 228, 229, 230, 231
VX, VT = 232, 240
VLW, VLR, VOW, VTR, VFA, VF, VLT, VPD, VPF, VST = 244, 245, 246, 247, 248, 249, 250, 251, 252, 253
def S(n): return S0 + 8 * (n & 1)
def P(n): return P0 + 4 * (n & 3)
def NM(t): return NM0 + 4 * t
def AQ(t, ks): return 16 * t + 4 * ks
def AK(par, j, ks): return 80 + 32 * par + 16 * j + 4 * ks
def AV(par, db): return 144 + 32 * par + 4 * db
def APAT(a, b): return (228 if a == b else 208) + 4 * a
def AL(p): return 248 + 4 * p
SK, SV, SQ, SO = 12, 16, 20, 24
sOff, sWL, sCnt, sCh, sC, sFlag, sW, sHalf, sHead, sMask, sStage = 28, 29, 30, 31, 32, 34, 35, 36, 37, 38, 39
sT = 40
sTmp = 46
sStamp = 56
sPC = 58
sThr = 76
sLin, sRot, sScr, sExp, sQM, sQE = 66, 67, 68, 69, 74, 75
VBASE = 32768
STAGE, STW = 65536, 21504
FLAGS = STAGE + 4 * STW
LSCR = FLAGS + 256
STAMPS = 0x26000
HEADQ, HEADK = 624 * 256, 1024 * 256
THR = 2.0 ** 60
LAST = 319

def vr(b, n=4): return f"v[{b}:{b+n-1}]"
def ar(b, n=4): return f"a[{b}:{b+n-1}]"
def sr(b, n=4): return f"s[{b}:{b+n-1}]"
def f32(x): return "0x%08x" % struct.unpack("<I", struct.pack("<f", x))[0]

def I(text, **kw):
    i = Ins(text)
    for k, v in kw.items():
        setattr(i, k, v)
    return i

def W(key, vm=None, ds=None):
    return I("s_waitcnt vmcnt(0)", key=key, need_vm=vm, need_ds=ds)

class Seg(list):
    def e(self, *lines):
        for l in lines:
            if isinstance(l, Ins):
                self.append(l)
            elif isinstance(l, int):
                self.append(Ins("s_nop 1"))
            elif l:
                self.append(Ins(l))

def cost(i):
    if i.kind == 'trans' or i.op.startswith('v_permlane'):
        return 8
    if i.kind == 'vmem':
        return 20 if 'store' in i.op else (16 if i.op == 'buffer_load_dwordx4' and 'lds' not in i.mods else 8)
    if i.kind == 'ds':
        return {'ds_write_b128': 20, 'ds_write2_b64': 20, 'ds_write_b64': 12, 'ds_write_b32': 8, 'ds_inc_u32': 8}.get(i.op, 4)
    if i.kind == 'nop':
        return 4 * i.n
    return 4

class Gap:
    def __init__(self, mf):
        self.mf = mf if isinstance(mf, Ins) else Ins(mf)
        self.sc, self.mem, self.val, self.post = [], [], [], []
        self.block = 0
    def nsc(self):
        return sum(i.kind != 'pseudo' for i in self.sc)
    def parts(self):
        return self.block + 4 * max(0, self.nsc() - 1) + sum(map(cost, self.mem)), sum(map(cost, self.val))
    def total(self, a, b):
        return (max(a, 4) if (b and 'smfmac' in self.mf.op) else a) + b
    def used(self):
        return self.total(*self.parts())
    def put(self, i):
        i = i if isinstance(i, Ins) else Ins(i)
        (self.val if i.kind in ('valu', 'trans') else self.mem if i.kind in ('ds', 'vmem') else self.sc).append(i)
    def out(self):
        return [self.mf] + self.sc + self.mem + self.val + self.post

def rank(i):
    return 2 if i.kind in ('valu', 'trans') else 1 if i.kind in ('ds', 'vmem') else 0

def fill(gaps, ops, late=False):
    seq, dist = [], 0
    for o in ops:
        if isinstance(o, int):
            dist += o
        else:
            seq.append((o if isinstance(o, Ins) else Ins(o), dist)); dist = 0
    n, m = len(seq), len(gaps)
    glue = lambda o: o.op in ('s_addc_u32', 's_cselect_b32')
    INF = 10 ** 9
    best = [[None] * (m + 1) for _ in range(n + 1)]
    def go(i, g):
        if i == n:
            return 0, None
        if g >= m:
            return INF, None
        if best[i][g] is not None:
            return best[i][g]
        base, nsc = gaps[g].used(), gaps[g].nsc()
        cands = [(go(i, g + 1)[0], 0)]
        (ua, ub), last = gaps[g].parts(), -1
        for k in range(i, n):
            o, d = seq[k]
            r = rank(o)
            if k > i and (d or r < last):
                break
            if r == 0:
                ua += 4 if nsc else 0
                nsc += 1
            elif r == 1:
                ua += cost(o)
            else:
                ub += cost(o)
            u = gaps[g].total(ua, ub)
            last = r
            if k + 1 < n and glue(seq[k + 1][0]):
                continue
            step = max(1, seq[k + 1][1]) if k + 1 < n else 1
            over = max(0, u - 8) - max(0, base - 8)
            cands.append((over + go(k + 1, g + step)[0], k + 1 - i))
        c = min(cands, key=lambda x: (x[0], x[1] if late else -x[1]))
        best[i][g] = c
        return c
    sys.setrecursionlimit(100000)
    g = seq[0][1] if n else 0
    total = go(0, g)[0]
    assert total < INF, "cannot fill"
    i = 0
    while i < n:
        k = go(i, g)[1]
        for o, _ in seq[i:i + k]:
            gaps[g].put(o)
        i += k
        g += max(1, seq[i][1]) if (k and i < n) else 1
    return total

def flat(gaps):
    s = Seg()
    for g in gaps:
        s.extend(g.out())
    return s

def stamp(s, level=1):
    if OPT['stamps'] >= level:
        s.e(f"s_memrealtime s[{sTmp+4}:{sTmp+5}]", f"s_memtime s[{sTmp+6}:{sTmp+7}]", "s_waitcnt lgkmcnt(0)",
            f"v_mov_b32 v{VST+1}, s{sTmp+4}",
            f"v_mov_b32 v{VST+2}, s{sTmp+6}" if not OPT['cnt'] else f"v_lshrrev_b32 v{VST+2}, 16, v{VIDX}",
            f"ds_write_b64 v{VST}, {vr(VST+1, 2)}", f"v_add_u32 v{VST}, 8, v{VST}", "s_waitcnt lgkmcnt(0)")

def item(i):
    if i >= 310:
        return (i - 310) // 2, 62 + (i & 1)
    return i % 5, i // 5

def k_reads(gb):
    par, slot = gb & 1, gb & 3
    return [I(f"ds_read_b128 {ar(AK(par, j, ks))}, v{VKA+ks} offset:{slot*8192 + j*4096}", tag=('K', gb), use=('K', gb, slot))
            for j in range(2) for ks in range(4)]

def v_reads(gb):
    par, slot = gb & 1, gb & 3
    return [I(f"ds_read_b64_tr_b16 {ar(AV(par, db) + 2*u, 2)}, v{VVA+db} offset:{VBASE + slot*8192 + u*4096}",
              tag=('V', gb), use=('V', gb, slot)) for db in range(8) for u in range(2)]

def dma(gb, part):
    i, isv, slot = part >> 1, part & 1, gb & 3
    m0 = I(f"s_add_u32 m0, s{sWL}, {isv*VBASE + slot*8192 + i*4096}")
    ld = I(f"buffer_load_dwordx4 v{VDV if isv else VDK}, {sr(SV if isv else SK)}, s{sOff} offen{POL[OPT['kvpol']]} lds",
           tag=('D', gb), fill=('V' if isv else 'K', gb, slot, 2), m0=m0.text)
    adv = [I(f"s_add_u32 s{sOff}, s{sOff}, 4096")] if isv else []
    if OPT['rot'] and part == 3:
        adv = [I(f"s_add_u32 s{sLin}, s{sLin}, 8192"), I(f"s_add_u32 s{sOff}, s{sLin}, s{sRot}"),
               I(f"s_and_b32 s{sOff}, s{sOff}, {HEADK-1}"), I(f"s_andn2_b32 s{sTmp+3}, s{sLin}, {HEADK-1}"),
               I(f"s_or_b32 s{sOff}, s{sOff}, s{sTmp+3}")]
    return m0, ld, adv

def qk(n):
    t, gb = item(n)
    return [f"v_mfma_f32_16x16x32_bf16 {vr(S(n)+4*j)}, {ar(AK(gb & 1, j, ks))}, {ar(AQ(t, ks))}, "
            f"{vr(NM(t)) if ks == 0 else vr(S(n)+4*j)}" for j in range(2) for ks in range(4)]

def pv(n):
    t, gb = item(n)
    return [f"v_mfma_f32_16x16x32_bf16 {vr(O(t, db))}, {vr(P(n))}, {ar(AV(gb & 1, db))}, {'0' if gb % 32 == 0 else vr(O(t, db))}"
            for db in range(8)]

def smf(n):
    a, b = item(n - 2)[0], item(n - 1)[0]
    assert a == b or b == (a + 1) % 5
    return f"v_smfmac_f32_16x16x64_bf16 {ar(AL((n - 2) // 160))}, {ar(APAT(a, b))}, {vr(P(n - 2), 8)}, v{VIDX}"

class St:
    def __init__(self, n):
        self.n = n
        a = qk(n + 1) if n + 1 <= LAST else []
        c = pv(n - 1) if n >= 1 else []
        ex = [f"v_exp_f32 v{S(n)+k}, v{S(n)+k}" for k in range(8)] if 0 <= n <= LAST else []
        cv = [f"v_cvt_pk_bf16_f32 v{P(n)+k}, v{S(n)+2*k}, v{S(n)+2*k+1}" for k in range(4)] if ex else []
        L = self.L = [Gap(m) for m in a + c]
        self.G = list(L)
        if len(L) == 16:
            for k in range(8):
                L[2 * k].put(ex[k])
            for k in range(4):
                L[4 * k + 3].put(cv[k])
            if n >= 2 and n % 2 == 0:
                self.G.insert(8, Gap(smf(n)))
        elif n == -1:
            L[7].post.append(Ins("s_nop 3"))
        elif n in (0, LAST):
            for g in range(8):
                if g >= 2 and g % 2 == 0:
                    L[g].put(cv[g // 2 - 1])
                L[g].put(ex[g])
            L[7].post += [Ins("s_nop 0"), Ins(cv[3]), Ins("s_nop 1")]
        else:
            self.G.insert(0, Gap(smf(n)))
    def frm(self, g):
        return self.G[self.G.index(self.L[g]):]
    def upto(self, g):
        return self.G[:self.G.index(self.L[g])]

VG = [5, 13]
STUBS = {}

def sync_check(st, key):
    name = "_".join(map(str, key))
    STUBS[name] = 1
    st.L[0].sc += [I(f"s_cbranch_vccnz L_wait_{name}", sync='check'), Ins(f"L_go_{name}:")]

def window(st, key, w=0, check=True):
    n, L = st.n, st.L
    gb, wi, vg = (n - 1) // 5, (n - 1) % 5, VG[w]
    other = 18 - vg
    if wi < 4:
        rd = (k_reads(gb + 1) + v_reads(gb + 1))[6 * wi:6 * wi + 6]
        sm = [g for g in st.G if g not in L]
        if wi < 3:
            slots = [L[1]] * (2 - len(sm)) + [L[3], L[7]] + sm + [L[11], L[15]]
        else:
            slots = [L[1], L[1], L[3], L[7]] + sm + [L[9], L[9]]
        for g, r in zip(slots, rd):
            g.put(r)
        m0, ld, adv = dma(gb + 4, wi)
        L[vg - 4].put(m0); L[vg].put(ld)
        if len(adv) == 1:
            L[vg + 1].put(adv[0])
        if wi == 0 and check:
            sync_check(st, key)
    else:
        if OPT['rot']:
            for k, a in enumerate(dma(gb + 4, 3)[2]):
                L[(2, 3, 4, 7, 8)[k]].put(a)
        L[0].put(W(key + ('sig',), vm={('D', gb + 2)}, ds={('K', gb + 1), ('V', gb + 1)}))
        L[1].put(I(f"ds_inc_u32 v{VFA}, v{VFA}", sync='signal'))
        pg = OPT['pollgap']
        cg = 13 if vg != 13 else 11
        L[pg].put(I(f"ds_read_b32 v{VF}, v{VFA}", tag=('F', gb), sync='poll'))
        L[6].put(f"s_add_u32 s{sExp}, s{sExp}, 4")
        L[cg].put(W(key + ('poll',), ds={('F', gb)}))
        L[cg].put(I(f"v_cmp_gt_u32 vcc, s{sExp}, v{VF}", sync='cmp'))
        L[15].block = 4
        L[vg].block = 8
    if wi == 2:
        L[15].put(W(key + ('k',), ds={('K', gb + 1)}))
    return st

def stubs():
    s = Seg()
    names = list(STUBS)
    s.e("s_branch L_hop0")
    for h in range(0, len(names), 2):
        s.e(".p2align 6", f"L_hop{h}:", f"s_branch L_hop{h+2}")
        for name in names[h:h + 2]:
            s.e(f"L_wait_{name}:", f"ds_read_b32 v{VF}, v{VFA}", "s_waitcnt lgkmcnt(0)",
                f"v_cmp_gt_u32 vcc, s{sExp}, v{VF}", "s_nop 4" if not OPT['cnt'] else f"v_add_u32 v{VIDX}, s77, v{VIDX}",
                f"s_cbranch_vccnz L_wait_{name}", f"s_branch L_go_{name}")
    s.e(f"L_hop{(len(names) + 1) // 2 * 2}:")
    return s

def scale_ops(x, t, packed):
    r = []
    if packed:
        for k in range(4):
            r += [f"v_lshlrev_b32 v{t+2*k}, 16, v{x+k}", f"v_and_b32 v{t+2*k+1}, s{sMask}, v{x+k}"]
        r += [f"v_pk_mul_f32 {vr(t+2*k, 2)}, {vr(t+2*k, 2)}, {sr(sC, 2)}" for k in range(4)]
        r += [f"v_cvt_pk_bf16_f32 v{x+k}, v{t+2*k}, v{t+2*k+1}" for k in range(4)]
        return r
    for h in range(2):
        for k in range(2):
            r += [f"v_lshlrev_b32 v{t+2*k}, 16, v{x+2*h+k}", f"v_and_b32 v{t+2*k+1}, s{sMask}, v{x+2*h+k}"]
        r += [f"v_mul_f32 v{t+k}, s{sC}, v{t+k}" for k in range(4)]
        r += [f"v_cvt_pk_bf16_f32 v{x+2*h+k}, v{t+2*k}, v{t+2*k+1}" for k in range(2)]
    return r

QM0 = f"s_mov_b32 m0, s{sQM}"
QADV = [f"s_add_u32 s{sCh}, s{sCh}, 1024", f"s_add_u32 s{sQM}, s{sQM}, 1024", f"s_min_u32 s{sQM}, s{sQM}, s{sQE}"]
def qb_load(i):
    return I(f"buffer_load_dwordx4 v{VQG}, {sr(SQ)}, s{sCh} offen{POL[OPT['qpol']]} lds", tag=('QB', i), m0=QM0)

def q_frag_reads(t, adr):
    return [I(f"ds_read_b128 {ar(AQ(t, ks))}, v{adr[ks]} offset:{4096*t}", tag=('Q', t)) for ks in range(4)]

def srd_rows(srd, ptr, p):
    a, b, c = sTmp, sTmp + 1, sTmp + 2
    return [f"s_xor_b32 s{b}, s{sHalf}, {p}", f"s_mul_i32 s{b}, s{b}, {320*256}",
            f"s_mul_i32 s{c}, s{sW}, {80*256}", f"s_add_u32 s{b}, s{b}, s{c}",
            f"s_add_u32 s{a}, s{sHead}, {p}", f"s_mul_i32 s{a}, s{a}, {HEADQ}", f"s_add_u32 s{a}, s{a}, s{b}",
            f"s_add_u32 s{srd}, s{ptr}, s{a}", f"s_addc_u32 s{srd+1}, s{ptr+1}, 0",
            f"s_sub_u32 s{b}, {HEADQ}, s{b}", f"s_min_u32 s{srd+2}, s{b}, {80*256}", f"s_mov_b32 s{srd+3}, 0x20000"]

def mref_mfma(t):
    return [f"v_mfma_f32_16x16x32_bf16 {vr(NM(t))}, {ar(AK(0, 0, ks))}, {ar(AQ(t, ks))}, {'0' if ks == 0 else vr(NM(t))}"
            for ks in range(4)]

def mref_valu(t):
    n = NM(t)
    r = [f"v_max3_f32 v{n}, v{n}, v{n+1}, v{n+2}", f"v_max_f32 v{n}, v{n}, v{n+3}"]
    for sw in ("v_permlane16_swap_b32", "v_permlane32_swap_b32"):
        r += [f"v_mov_b32 v{n+1}, v{n}", 2, f"{sw} v{n}, v{n+1}", f"v_max_f32 v{n}, v{n}, v{n+1}"]
    return r + [f"v_sub_f32 v{n+k}, {float(-OPT['beta'])}, v{n}" for k in (3, 2, 1, 0)]

def RL(t): return VX + 4 * (t & 1)

def l_ops(p, t, key):
    x, y = (VQG if t == 3 else VLT), VT + 3
    a = AL(p) + 2 * (t & 1)
    return [f"v_accvgpr_read_b32 v{x}, a{a}", f"v_accvgpr_read_b32 v{y}, a{a+1}", f"v_add_f32 v{x}, v{x}, v{y}",
            f"v_rcp_f32 v{y}, v{x}", f"ds_write_b32 v{VLW}, v{y}",
            I(f"ds_read_b128 {vr(RL(t))}, v{VLR} offset:{64*(t >> 1)}", tag=key + ('RL', t))]

def flag_ops(bit):
    return [f"v_add_f32 v{VLT}, v{VLT}, v{VQG}", f"v_cmp_ngt_f32 s[{sTmp}:{sTmp+1}], s{sThr}, v{VLT}", 2,
            f"s_cmp_lg_u64 s[{sTmp}:{sTmp+1}], 0", f"s_cselect_b32 s{sTmp}, {bit}, 0", f"s_or_b32 s{sFlag}, s{sFlag}, s{sTmp}"]

def pk_burst(t):
    return [Ins(f"v_pk_mul_f32 {vr(O(t, db)+2*k, 2)}, {vr(O(t, db)+2*k, 2)}, {vr(RL(t)+2*k, 2)}")
            for db in range(8) for k in range(2)]

def cvt_write(t):
    r = []
    for u in range(4):
        for db in (2 * u, 2 * u + 1):
            b = O(t, db)
            r += [f"v_cvt_pk_bf16_f32 v{b+k}, v{b+2*k}, v{b+2*k+1}" for k in range(2)]
        r.append(f"ds_write2_b64 v{VOW}, {vr(O(t, 2*u), 2)}, {vr(O(t, 2*u+1), 2)} offset0:{32*u} offset1:{32*u+16}")
    return r + [f"v_add_u32 v{VOW}, 4096, v{VOW}"]

def prologue():
    s = Seg()
    T = 72
    if OPT['early']:
        s.e("s_memrealtime s[64:65]")
    s.e("s_load_dwordx4 s[4:7], s[0:1], 0", "s_load_dwordx4 s[8:11], s[0:1], 16")
    if OPT['stamps']:
        s.e(f"s_load_dwordx2 s[{sStamp}:{sStamp+1}], s[0:1], 40")
    s.e("s_cmp_ge_u32 s2, 256", "s_cbranch_scc1 L_end")
    Wv, L, Q16, G, R, X, Y = T, VLN, T + 2, T + 3, T + 4, T + 5, T + 6
    s.e(f"v_lshrrev_b32 v{Wv}, 6, v0", f"v_and_b32 v{L}, 63, v0", f"v_lshlrev_b32 v{VPF}, 7, v0",
        f"v_readfirstlane_b32 s{sW}, v{Wv}", f"s_getpc_b64 s[{sPC}:{sPC+1}]", "L_pc:",
        f"v_min_u32 v{VPD}, L_trans-L_pc, v{VPF}",
        I(f"global_load_dword v{VPD}, v{VPD}, s[{sPC}:{sPC+1}]", tag='pf'))
    s.e(f"s_and_b32 s{sHead}, s2, 7", f"s_lshl_b32 s{sHead}, s{sHead}, 5",
        f"s_lshr_b32 s3, s2, 3", f"s_and_b32 s{sHalf}, s3, 1", f"s_and_b32 s3, s3, 30",
        f"s_add_u32 s{sHead}, s{sHead}, s3", f"s_lshl_b32 s{sWL}, s{sW}, 10")
    s.e(f"v_and_b32 v{Q16}, 15, v{L}", f"v_lshrrev_b32 v{G}, 4, v{L}",
        f"v_lshlrev_b32 v{X}, 2, v{G}", f"v_xor_b32 v{X}, v{Q16}, v{X}", f"v_lshlrev_b32 v{X}, 4, v{X}",
        f"v_lshl_add_u32 v{VQG}, v{G}, 8, v{X}",
        f"v_lshl_add_u32 v{R}, v{Wv}, 2, v{G}",
        f"v_xor_b32 v{X}, v{Q16}, v{R}", f"v_lshlrev_b32 v{X}, 4, v{X}", f"v_lshl_add_u32 v{VDK}, v{R}, 8, v{X}",
        f"v_and_b32 v{X}, 7, v{R}", f"v_lshlrev_b32 v{X}, 1, v{X}", f"v_xor_b32 v{X}, v{Q16}, v{X}",
        f"v_lshlrev_b32 v{X}, 4, v{X}", f"v_lshl_add_u32 v{VDV}, v{R}, 8, v{X}")
    s.e(f"s_mul_i32 s3, s{sHead}, {HEADK}", f"s_mov_b32 s{SK+2}, {2*HEADK}", f"s_mov_b32 s{SK+3}, 0x20000",
        f"s_mov_b32 s{SV+2}, {2*HEADK}", f"s_mov_b32 s{SV+3}, 0x20000", f"s_mov_b32 s{sOff}, 0")
    if OPT['rot']:
        s.e(f"s_lshr_b32 s{sRot}, s{sHead}, 1", f"s_mul_i32 s{sRot}, s{sRot}, {OPT['rot']}", f"s_and_b32 s{sRot}, s{sRot}, 31",
            f"s_lshl_b32 s{sRot}, s{sRot}, 13", f"s_mov_b32 s{sOff}, s{sRot}", f"s_mov_b32 s{sLin}, 0")
    for t in range(NT):
        s.e(f"s_mov_b32 s{sT+t}, {4096*t}")
    rows = srd_rows(SQ, 4, 0)
    s.e(*rows[:7], *rows[9:])
    if OPT['stamps']:
        s.e(f"v_lshlrev_b32 v{VST}, 8, v{Wv}", f"v_add_u32 v{VST}, {STAMPS}, v{VST}")
    s.e("s_waitcnt lgkmcnt(0)", *rows[7:9])
    def blk(gb):
        for p in range(4):
            m0, ld, adv = dma(gb, p)
            s.e(m0, "s_nop 0", ld, *adv)
    def qload(t):
        for c in range(4):
            s.e(I(f"buffer_load_dwordx4 {vr(80 + 16*t + 4*c)}, v{VQG}, {sr(SQ)}, s{sT+t} offen offset:{1024*c}{POL[OPT['qpol']]}",
                  tag=('QA', t)))
    adr = [VQR, VT, VT + 1, VT + 2]
    VSW = VX
    def qwait(t):
        s.e(W(('pro', 'q', t), vm={('QA', t)}))
    def qprep(t):
        for c in range(4):
            s.e(*scale_ops(80 + 16 * t + 4 * c, 64, True))
        for c in range(4):
            s.e(f"ds_write_b128 v{VSW}, {vr(80 + 16*t + 4*c)} offset:{4096*t + 1024*c}")
        s.e(*q_frag_reads(t, adr))
    def mref(t):
        s.e(W(('pro', 'm', t), ds={('Q', t), ('K', 0)}), *mref_mfma(t), "s_nop 7", *mref_valu(t), "s_nop 1")
    qload(0)
    s.e(f"s_add_u32 s{SK}, s6, s3", f"s_addc_u32 s{SK+1}, s7, 0", f"s_add_u32 s{SV}, s8, s3", f"s_addc_u32 s{SV+1}, s9, 0")
    blk(0); qload(1)
    stamp(s)
    s.e(f"v_add_u32 v{VPF}, L_trans-L_pc, v{VPF}", f"v_min_u32 v{VPF}, L_final-L_pc, v{VPF}")
    s.e(f"s_mov_b32 s{sFlag}, {OPT['force']}", f"s_mov_b32 s{sMask}, 0xffff0000",
        f"s_mov_b32 s{sC}, {f32(math.log2(math.e) / math.sqrt(128.0))}", f"s_mov_b32 s{sC+1}, s{sC}",
        f"s_mul_i32 s{sStage}, s{sW}, {STW}", f"s_add_u32 s{sStage}, s{sStage}, {STAGE}")
    for ks in range(4):
        s.e(f"v_add_u32 v{X}, {4*ks}, v{G}", f"v_xor_b32 v{X}, v{X}, v{Q16}", f"v_lshlrev_b32 v{X}, 4, v{X}",
            f"v_lshl_add_u32 v{VKA+ks}, v{Q16}, 8, v{X}")
    s.e(f"v_lshrrev_b32 v{X}, 2, v{L}", f"v_and_b32 v{Y}, 3, v{L}",
        f"v_lshlrev_b32 v{R}, 4, v{X}", f"v_lshl_add_u32 v{VOS}, v{Y}, 8, v{R}",
        f"v_lshlrev_b32 v{R}, 4, v{G}", f"v_lshl_add_u32 v{R}, v{Q16}, 8, v{R}", f"v_lshl_add_u32 v{R}, v{Y}, 6, v{R}",
        f"v_add_u32 v{VQR}, s{sStage}, v{R}", f"v_lshl_add_u32 v{VSW}, v{L}, 4, s{sStage}",
        f"v_lshl_add_u32 v{VSL}, v{L}, {2 if OPT['qw'] == 32 else 3}, s{sStage}",
        f"v_lshl_add_u32 v{VTR}, v{G}, 8, s{sStage}", f"v_lshl_add_u32 v{VTR}, v{Y}, 6, v{VTR}",
        f"v_bfe_u32 v{R}, v{L}, 2, 2", f"v_lshl_add_u32 v{VTR}, v{R}, 3, v{VTR}",
        f"v_lshl_add_u32 v{VOW}, v{Q16}, 3, s{sStage}", f"v_lshl_add_u32 v{VOW}, v{G}, 10, v{VOW}",
        f"s_lshl_b32 s{sScr}, s{sW}, 8", f"s_add_u32 s{sScr}, s{sScr}, {LSCR}",
        f"v_lshl_add_u32 v{VLW}, v{L}, 2, s{sScr}", f"v_lshl_add_u32 v{VLR}, v{G}, 4, s{sScr}",
        f"v_lshlrev_b32 v{VFA}, 2, v{L}", f"v_add_u32 v{VFA}, {FLAGS}, v{VFA}", f"v_mov_b32 v{VF}, 0",
        f"ds_write_b32 v{VFA}, v{VF}", f"s_mov_b32 s{sExp}, 0", "s_mov_b32 s77, 0x10000" if OPT['cnt'] else "", f"s_mov_b32 s{sThr}, {f32(THR)}",
        f"v_lshlrev_b32 v{Y}, 3, v{Y}", f"v_lshl_add_u32 v{Y}, v{X}, 8, v{Y}", f"v_and_b32 v{X}, 7, v{X}")
    for db in range(8):
        s.e(f"v_xor_b32 v{R}, {db}, v{X}", f"v_lshl_add_u32 v{VVA+db}, v{R}, 5, v{Y}")
    s.e(f"v_and_b32 v{X}, 1, v{L}", f"v_mul_u32_u24 v{X}, 0xaaaa, v{X}", f"v_add_u32 v{VIDX}, 0x4444, v{X}",
        f"v_lshrrev_b32 v{X}, 1, v{Q16}", f"v_lshrrev_b32 v{Y}, 5, v{L}", f"v_sub_u32 v{Y}, v{X}, v{Y}",
        f"v_cmp_gt_i32 vcc, 0, v{Y}", f"v_mov_b32 v{R}, 0x3f803f80", f"v_cmp_eq_u32 s[{sTmp}:{sTmp+1}], 5, v{X}",
        f"v_cndmask_b32 v{Y}, v{Y}, 4, vcc", "s_nop 0", f"v_cndmask_b32 v{Y}, v{Y}, 7, s[{sTmp}:{sTmp+1}]")
    for a in range(NT):
        s.e(f"v_cmp_eq_u32 vcc, {a}, v{Y}", f"v_cmp_eq_u32 s[{sTmp}:{sTmp+1}], {a}, v{X}", "s_nop 0",
            f"v_cndmask_b32 v{T+7}, 0, v{R}, vcc", f"v_cndmask_b32 v{T+1}, 0, v{R}, s[{sTmp}:{sTmp+1}]")
        for r in range(4):
            s.e(f"v_accvgpr_write_b32 a{APAT(a, -1)+r}, v{T+7}", f"v_accvgpr_write_b32 a{APAT(a, a)+r}, v{T+1}")
    for k in range(8):
        s.e(f"v_accvgpr_write_b32 a{AL(0)+k}, 0")
    for ks in range(1, 4):
        s.e(f"v_xor_b32 v{adr[ks]}, {64*ks}, v{VQR}")
    s.e("L_stubs:")
    qwait(0); stamp(s); qload(2); qprep(0)
    s.e(W(('pro', 'b0'), vm={('D', 0)}), "s_barrier", *k_reads(0))
    qload(3)
    s.e(*v_reads(0))
    mref(0)
    s.extend(flat(St(-1).G))
    qwait(1); qload(4); qprep(1); mref(1)
    s.extend(flat(St(0).G))
    qwait(2); blk(1); qprep(2); mref(2)
    s.extend(flat(St(1).G))
    qwait(3); blk(2); qprep(3); mref(3)
    s.extend(flat(St(2).G))
    qwait(4); blk(3); qprep(4); mref(4)
    stamp(s)
    s.e(W(('pro', 'b1'), vm={('D', 1)}), "s_barrier")
    st = {n: St(n) for n in range(3, 16)}
    fill(st[3].upto(11), k_reads(1))
    st[3].L[15].put(W(('pro', 'k1'), ds={('K', 1)}))
    d = [dma(4, p) for p in range(4)]
    for p, (n, g) in enumerate(((3, 13), (4, 5), (4, 13), (5, 5))):
        st[n].L[g - 3].put(d[p][0]); st[n].L[g].put(d[p][1])
        for k, a in enumerate(d[p][2]):
            st[n].L[g + 1 + k].put(a)
    st[5].L[14].put(W(('pro', 'b2'), vm={('D', 2)}, ds={('V', 1)}))
    st[5].L[15].put("s_barrier"); st[5].L[15].block = 4
    fill(st[3].frm(11) + st[4].G + st[5].upto(10), v_reads(1))
    for n in range(6, 16):
        window(st[n], ('peel', n), check=(n > 6))
    fill(st[6].G + st[7].G, srd_rows(SQ, 4, 1) + [
        f"s_mov_b32 s{sCh}, {0x100000 if OPT['noqb'] else 0}", f"s_mov_b32 s{sCnt}, 7",
        f"s_mov_b32 s{sQM}, s{sStage}", f"s_add_u32 s{sQE}, s{sStage}, 20480"])
    for i, n in enumerate((8, 11, 13)):
        st[n].L[9].put(QM0); st[n].L[13].put(qb_load(i))
        if i < 2:
            fill(st[n + 1].frm(7), QADV)
    for n in range(3, 16):
        s.extend(flat(st[n].G))
    return s

def dispatch(name):
    s = Seg()
    if OPT['waves'] == 2:
        s.e(f"s_bitcmp1_b32 s{sW}, {OPT['wsel']}", f"s_cbranch_scc1 L_{name}1")
        return s
    for w in range(1, OPT['waves']):
        s.e(f"s_cmp_eq_u32 s{sW}, {w}", f"s_cbranch_scc1 L_{name}{w}")
    return s

def body(name, n0, w, extras):
    st = [window(St(n0 + k), (name, w, k), w) for k in range(20)]
    vg = VG[w]
    tot = 0
    if not OPT['nopf']:
        st[4].L[vg].block = 0
        st[4].L[vg].put(I(f"global_load_dword v{VPD}, v{VPD}, s[{sPC}:{sPC+1}]", tag='pf'))
        tot += fill(st[2].G + st[3].G, [f"s_cmp_eq_u32 s{sCnt}, 1", f"s_cselect_b32 s{sScr}, -1, 0", 1,
                                        f"v_and_b32 v{VPD}, s{sScr}, v{VPF}"])
    st[19].L[10].put(f"s_sub_u32 s{sCnt}, s{sCnt}, 1")
    st[19].L[12].put(f"s_cmp_lg_u32 s{sCnt}, 0")
    ops = []
    for c in range(3):
        o, slot, m0, adv = extras(c)
        if OPT['noex']:
            continue
        g = st[9 + 5 * c].L
        g[vg].block = 0
        g[vg].put(slot)
        if m0:
            g[vg - 4].put(m0)
        tot += fill(st[7 + 5 * c].G, adv)
        if name == 'A':
            ops += o
        else:
            tot += fill(st[5 + 5 * c].G + st[6 + 5 * c].G + st[7 + 5 * c].G, o)
    tot += fill(sum((x.G for x in st), []), ops) if ops else 0
    s = Seg()
    stamp(s, 2)
    s.extend(flat(sum((x.G for x in st), [])))
    drop = lambda i: ((OPT['nodma'] and hasattr(i, 'fill')) or (OPT['nord'] and hasattr(i, 'use')))
    s = Seg(i for i in s if not drop(i))
    s.e(f"s_cbranch_scc1 L_{name}{w}")
    return s

def body_a(trip, w):
    def extras(c):
        i = 3 * trip + c
        x = VX + 4 * (c & 1)
        sc = scale_ops(x, VT, False)
        if OPT['qw'] == 32:
            rd = [f"ds_read2st64_b32 {vr(x+2*h, 2)}, v{VSL} offset0:{4*c+2*h} offset1:{4*c+2*h+1}" for h in range(2)]
            wr = [[f"ds_write_b32 v{VSL}, v{x+2*h+k} offset:{1024*c + 256*(2*h+k)}" for k in range(2)] for h in range(2)]
        else:
            rd = [f"ds_read_b64 {vr(x+2*h, 2)}, v{VSL} offset:{1024*c + 512*h}" for h in range(2)]
            wr = [[f"ds_write_b64 v{VSL}, {vr(x+2*h, 2)} offset:{1024*c + 512*h}"] for h in range(2)]
        ops = [W(('A', w, 'q', c), vm={('QB', i)})] + [I(r, tag=('QR', i)) for r in rd]
        ops += [6, W(('A', w, 'r', c), ds={('QR', i)})] + sc[:10] + wr[0] + sc[10:] + wr[1]
        ops += [f"v_add_u32 v{VSL}, 3072, v{VSL}"] if c == 2 else []
        return ops, qb_load(i + 3), QM0, QADV
    return body('A', 16 + 20 * trip, w, extras)

def body_b(trip, w):
    def extras(c):
        i = 3 * trip + c
        ops = [I(f"ds_read_b64_tr_b16 {vr(VX+2*h, 2)}, v{VTR} offset:{1024*c + 32*h}", tag=('OA', i)) for h in range(2)]
        ops += [12, W(('B', w, 'o', c), ds={('OA', i)})]
        ops += [f"v_add_u32 v{VTR}, 3072, v{VTR}"] if c == 2 else []
        st = I(f"buffer_store_dwordx4 {vr(VX)}, v{VOS}, {sr(SO)}, s{sCh} offen{POL[OPT['oapol']]}")
        return ops, st, None, QADV[:1]
    return body('B', 166 + 20 * trip, w, extras)

def transition():
    s = Seg()
    stamp(s)
    st = {n: window(St(n), ('tr', n)) for n in range(156, 166)}
    adr = [VQR, VT, VT + 1, VT + 2]
    st[160].L[VG[0]].block = st[165].L[VG[0]].block = 0
    fill(st[156].G, [f"v_xor_b32 v{adr[ks]}, {64*ks}, v{VQR}" for ks in range(1, 4)] +
         q_frag_reads(0, adr) + q_frag_reads(1, adr))
    for t in range(2, 5):
        fill(st[155 + t].upto(10), q_frag_reads(t, adr))
    for t in range(NT):
        x = st[157 + t]
        x.L[13].put(W(('tr', 'mq', t), ds={('Q', t), ('K', 32)}))
        k = x.G.index(x.L[14])
        x.G[k:k] = [Gap(m) for m in mref_mfma(t)]
    for t in range(NT):
        fill(st[158 + t].L[2:15], mref_valu(t))
    lstep = [157, 159, 160, 161, 162]
    for t in range(NT):
        fill(st[lstep[t]].G[:-8], l_ops(0, t, ('tr',)))
    pstep = [157, 159, 160, 162, 163]
    for t in range(NT):
        g = st[pstep[t]].G[-2]
        g.sc.append(W(('tr', 'rl', t), ds={('tr', 'RL', t)}))
        g.block -= 8
        g.post += pk_burst(t)
    win = [st[158].G + st[159].G, st[160].G + st[161].upto(6), st[161].frm(6) + st[162].G,
           st[163].G + st[164].upto(4), st[164].frm(4) + st[165].upto(6)]
    for t in range(NT):
        fill(win[t], cvt_write(t))
    fill(st[163].G + st[164].G, srd_rows(SO, 10, 0) + [f"s_mov_b32 s{sCh}, -1024", f"s_mov_b32 s{sCnt}, 7"])
    fill(st[165].frm(6)[:-3], flag_ops(1))
    fill(st[165].frm(6), [f"v_lshlrev_b32 v{VPF}, 7, v{VLN}", f"v_add_u32 v{VPF}, L_final-L_pc, v{VPF}",
                          f"v_min_u32 v{VPF}, L_code_end-L_pc-4, v{VPF}"])
    for n in range(156, 166):
        s.extend(flat(st[n].G))
    stamp(s)
    return s

def finale():
    s = Seg()
    stamp(s)
    st = {n: St(n) for n in range(306, 321)}
    sync_check(st[306], ('fin',))
    fill(st[306].frm(1) + st[307].G + st[308].upto(6), k_reads(62) + v_reads(62))
    st[308].L[6].put(W(('fin', 'b'), vm={('D', 63)}))
    st[308].L[7].put("s_barrier"); st[308].L[7].block = 4
    st[308].L[15].put(W(('fin', 'k62'), ds={('K', 62)}))
    fill(st[308].frm(8) + st[309].upto(10), k_reads(63))
    st[309].L[15].put(W(('fin', 'k63'), ds={('K', 63)}))
    v63 = v_reads(63)
    for g, k in ((9, 2), (11, 1), (13, 2), (15, 1)):
        for _ in range(k):
            st[310].L[g].put(v63.pop(0))
    fill(st[311].G, v63)
    st[312].L[6].put(W(('fin', 'v63'), ds={('V', 63)}))
    fill(st[309].frm(10) + st[310].upto(8), [f"v_add_u32 v{VOW}, {-5*4096}, v{VOW}", f"v_add_u32 v{VTR}, {-7*3072}, v{VTR}"])
    fill(st[306].frm(1) + st[307].G, srd_rows(SO, 10, 1))
    st[318].L[15].post.append(Ins("s_nop 1"))
    def readback(t):
        return [I(f"ds_read_b64_tr_b16 {vr(O(t, c)+2*h, 2)}, v{VTR} offset:{4096*t + 1024*c + 32*h}", tag=('OB', t, c))
                for c in range(4) for h in range(2)]
    def stores(t, gapn):
        r = []
        for c in range(4):
            pol = POL[OPT['olast'] if t == 4 else OPT['opol']]
            r += [W(('fin', 'o', t, c), ds={('OB', t, c)}),
                  f"buffer_store_dwordx4 {vr(O(t, c))}, v{VOS}, {sr(SO)}, s{sT+t} offen offset:{1024*c}{pol}"]
            if gapn:
                r.append(gapn)
        return r
    for t in range(4):
        n = 312 + 2 * t
        nxt = st[n + 1]
        cut = 8 if t < 3 else 5
        fill(st[n].frm(14) + nxt.G[:cut - 3], l_ops(1, t, ('fin',)))
        g = nxt.G[cut]
        g.sc.append(W(('fin', 'rl', t), ds={('fin', 'RL', t)}))
        g.block -= 8
        g.post += pk_burst(t)
        if t < 3:
            fill(nxt.G[cut + 1:] + st[n + 2].upto(13), cvt_write(t) + readback(t))
            fill(st[n + 2].frm(13) + st[n + 3].G, [2] + stores(t, 2))
        else:
            fill(nxt.G[cut + 1:] + st[320].G[:5], cvt_write(t) + readback(t))
    fill(st[320].G[5:], l_ops(1, 4, ('fin',)))
    for n in range(306, 321):
        s.extend(flat(st[n].G))
    stamp(s)
    s.e(*stores(3, 0), W(('fin', 'rl', 4), ds={('fin', 'RL', 4)}), *pk_burst(4), *cvt_write(4)[:-1], *readback(4),
        *flag_ops(2), *stores(4, 0))
    stamp(s)
    if OPT['stamps']:
        s.e("s_waitcnt vmcnt(0)")
        stamp(s)
        s.e(f"v_lshlrev_b32 v0, 2, v{VLN}",
            f"s_lshl_b32 s3, s{sW}, 8", "v_add_u32 v0, s3, v0", f"v_add_u32 v1, {STAMPS}, v0",
            "ds_read_b32 v2, v1", "s_lshl_b32 s3, s2, 10", "v_add_u32 v0, s3, v0", "s_waitcnt lgkmcnt(0)",
            f"global_store_dword v0, v2, s[{sStamp}:{sStamp+1}]")
    if OPT['probe'] >= 0:
        a, b = OPT['pa'], OPT['pb']
        s.e(f"v_mov_b32 v4, s{sW}", "v_lshlrev_b32 v0, 8, v4", f"v_add_u32 v0, {STAMPS}, v0",
            "ds_read_b64 v[2:3], v0", f"ds_read_b64 v[4:5], v0 offset:{8*a}", f"ds_read_b64 v[6:7], v0 offset:{8*b}",
            "s_waitcnt lgkmcnt(0)", "v_sub_u32 v6, v6, v4", "v_sub_u32 v7, v7, v5")
        s.e(["v_mov_b32 v6, 5000", "v_lshlrev_b32 v6, 2, v6", "v_lshrrev_b32 v6, 3, v7"][OPT['probe']])
        s.e("v_add_u32 v6, 10000, v6", "s_nop 1", "v_readfirstlane_b32 s60, v6", "v_readfirstlane_b32 s61, v2", "s_nop 3",
            "s_mov_b32 s61, s64" if OPT['early'] else "s_nop 0",
            "L_spin:", "s_memrealtime s[62:63]", "s_waitcnt lgkmcnt(0)", "s_sub_u32 s62, s62, s61",
            "s_cmp_lt_u32 s62, s60", "s_cbranch_scc1 L_spin")
    s.e(f"s_cmp_lg_u32 s{sFlag}, 0", "s_cbranch_scc1 L_slow", "L_end:", "s_endpgm")
    return s

def slow_path():
    QF, KF, VF, SS, PP, NN, OO = 0, 16, 48, 80, 88, 92, 96
    AG, AL_, AT, AO, MX, LS, T = 128, 129, 130, 131, 132, 133, 136
    sP, sTile, sKo, sEnd = 70, 71, 72, 73
    head, tile, mx, mid, blk, out = Seg(), Seg(), Seg(), Seg(), Seg(), Seg()
    head.e("L_slow:", "s_waitcnt vmcnt(0) lgkmcnt(0)",
           f"v_and_b32 v{T}, 15, v{VLN}", f"v_lshrrev_b32 v{T+1}, 4, v{VLN}",
           f"v_lshlrev_b32 v{AG}, 4, v{T+1}", f"v_lshl_add_u32 v{AG}, v{T}, 8, v{AG}",
           f"v_lshlrev_b32 v{AO}, 3, v{T+1}", f"v_lshl_add_u32 v{AO}, v{T}, 8, v{AO}",
           f"v_lshlrev_b32 v{AL_}, 4, v{VLN}",
           f"v_lshrrev_b32 v{T}, 2, v{VLN}", f"v_and_b32 v{T+1}, 3, v{VLN}",
           f"v_lshl_add_u32 v{AT}, v{T}, 8, s{sStage}", f"v_lshl_add_u32 v{AT}, v{T+1}, 3, v{AT}",
           f"s_mov_b32 s{sP}, 0",
           "L_slow_pass:", f"s_lshr_b32 s{sTmp}, s{sFlag}, s{sP}", f"s_bitcmp1_b32 s{sTmp}, 0", "s_cbranch_scc0 L_slow_next",
           *srd_rows(SQ, 4, f"s{sP}"), *srd_rows(SO, 10, f"s{sP}"), f"s_mov_b32 s{sTile}, 0")
    tile.e("L_slow_tile:")
    tile.e(*[f"buffer_load_dwordx4 {vr(QF+4*ks)}, v{AG}, {sr(SQ)}, s{sTile} offen offset:{64*ks}" for ks in range(4)],
           f"s_mul_i32 s{sKo}, s{sP}, {HEADK}", f"s_add_u32 s{sEnd}, s{sKo}, {HEADK}",
           f"v_mov_b32 v{MX}, 0xff800000", "s_waitcnt vmcnt(0)")
    for ks in range(4):
        tile.e(*scale_ops(QF + 4 * ks, T, True))
    def chain(d, k, c):
        return [f"v_mfma_f32_16x16x32_bf16 {vr(d)}, {vr(k+4*ks)}, {vr(QF+4*ks)}, {c if ks == 0 else vr(d)}" for ks in range(4)]
    def across(op, r):
        x = []
        for sw in ("v_permlane16_swap_b32", "v_permlane32_swap_b32"):
            x += [f"v_mov_b32 v{T}, v{r}", "s_nop 1", f"{sw} v{r}, v{T}", f"{op} v{r}, v{r}, v{T}"]
        return x
    mx.e("L_slow_max:")
    mx.e(*[f"buffer_load_dwordx4 {vr(KF+4*ks)}, v{AG}, {sr(SK)}, s{sKo} offen offset:{64*ks}" for ks in range(4)],
         f"s_add_u32 s{sKo}, s{sKo}, 4096", "s_waitcnt vmcnt(0)", *chain(SS, KF, "0"), "s_nop 7",
         f"v_max3_f32 v{MX}, v{MX}, v{SS}, v{SS+1}", f"v_max3_f32 v{MX}, v{MX}, v{SS+2}, v{SS+3}",
         f"s_cmp_lt_u32 s{sKo}, s{sEnd}", "s_cbranch_scc1 L_slow_max")
    mid.e(*across("v_max_f32", MX), *[f"v_sub_f32 v{NN+k}, 0, v{MX}" for k in range(4)],
          *[f"v_mov_b32 v{OO+k}, 0" for k in range(32)], f"v_mov_b32 v{LS}, 0", f"s_mul_i32 s{sKo}, s{sP}, {HEADK}")
    blk.e("L_slow_blk:")
    for j in range(2):
        blk.e(f"s_add_u32 m0, s{sStage}, {4096*j}",
              *[f"buffer_load_dwordx4 {vr(KF+16*j+4*ks)}, v{AG}, {sr(SK)}, s{sKo} offen offset:{64*ks}" for ks in range(4)],
              *[f"buffer_load_dwordx4 v{AL_}, {sr(SV)}, s{sKo} offen offset:{1024*i} lds" for i in range(4)],
              f"s_add_u32 s{sKo}, s{sKo}, 4096")
    blk.e("s_waitcnt vmcnt(0)")
    blk.e(*[f"ds_read_b64_tr_b16 {vr(VF+4*db+2*u, 2)}, v{AT} offset:{4096*u + 32*db}" for db in range(8) for u in range(2)])
    blk.e(*chain(SS, KF, vr(NN)), *chain(SS + 4, KF + 16, vr(NN)), "s_nop 7",
          *[f"v_exp_f32 v{SS+k}, v{SS+k}" for k in range(8)], "s_nop 0",
          *[f"v_add_f32 v{LS}, v{LS}, v{SS+k}" for k in range(8)],
          *[f"v_cvt_pk_bf16_f32 v{PP+k}, v{SS+2*k}, v{SS+2*k+1}" for k in range(4)],
          "s_waitcnt lgkmcnt(0)", "s_nop 0",
          *[f"v_mfma_f32_16x16x32_bf16 {vr(OO+4*db)}, {vr(VF+4*db)}, {vr(PP)}, {vr(OO+4*db)}" for db in range(8)],
          f"s_cmp_lt_u32 s{sKo}, s{sEnd}", "s_cbranch_scc1 L_slow_blk")
    out.e(*across("v_add_f32", LS), f"v_rcp_f32 v{LS}, v{LS}", "s_nop 0",
          *[f"v_mul_f32 v{OO+k}, v{OO+k}, v{LS}" for k in range(32)])
    for db in range(8):
        b = OO + 4 * db
        out.e(f"v_cvt_pk_bf16_f32 v{b}, v{b}, v{b+1}", f"v_cvt_pk_bf16_f32 v{b+1}, v{b+2}, v{b+3}",
              f"buffer_store_dwordx2 {vr(b, 2)}, v{AO}, {sr(SO)}, s{sTile} offen offset:{32*db}")
    out.e(f"s_add_u32 s{sTile}, s{sTile}, 4096", f"s_cmp_lt_u32 s{sTile}, {4096*NT}", "s_cbranch_scc1 L_slow_tile")
    end = Seg()
    end.e("L_slow_next:", f"s_add_u32 s{sP}, s{sP}, 1", f"s_cmp_lt_u32 s{sP}, 2", "s_cbranch_scc1 L_slow_pass", "s_endpgm")
    once = tile + mx + mx + mid + blk + blk + out
    return Seg(head + tile + mx + mid + blk + out + end), Seg(head + once + once + end)

def est_cycles(seq):
    tot, cur, nsc, inm = 0, 0, 0, False
    for i in seq:
        if i.kind == 'pseudo':
            continue
        if i.kind == 'mfma':
            tot += max(16, cur) if inm else cur
            cur, nsc, inm, sm = 8, 0, True, 'smfmac' in i.op
        elif rank(i) == 0:
            nsc += 1
            cur += cost(i) - (4 if (inm and nsc == 1 and cur == 8) else 0)
        else:
            if i.op.startswith('v_pk') and inm:
                cur = max(cur, 24)
            if inm and sm and rank(i) == 2:
                cur = max(cur, 12)
            cur += cost(i)
    return tot + (max(16, cur) if inm else cur)

def check_m0(trace):
    cur, probs = None, []
    for i in trace:
        if 'm0' in i.wr:
            cur = i.text
        if hasattr(i, 'm0') and i.m0 != cur:
            probs.append(f"m0 mismatch at {i.tag}: have '{cur}' want '{i.m0}'")
    return probs

def build():
    nw = OPT['waves']
    pro, trn, fin = prologue(), transition(), finale()
    A = [[body_a(k, w) for k in range(7)] for w in range(nw)]
    B = [[body_b(k, w) for k in range(7)] for w in range(nw)]
    da, db = dispatch('A'), dispatch('B')
    traces = [Seg(pro + da + sum(A[w], []) + trn + db + sum(B[w], []) + fin) for w in range(nw)]
    res = {}
    mn = lambda x, y: y if x is None else (x if y is None else min(x, y))
    for tr in traces:
        for k, (a, b) in resolve_waits(tr).items():
            pa, pb = res.get(k, (None, None))
            res[k] = (mn(pa, a), mn(pb, b))
    probs = []
    for w, tr in enumerate(traces):
        apply_waits(tr, res)
        for X in (A[w], B[w]):
            for k in range(1, 7):
                assert [i.text for i in X[k]] == [i.text for i in X[0]], "loop body not periodic"
        probs += check(tr, "trace") + check_ring(tr) + check_m0(tr)
    slow, slow_tr = slow_path()
    probs += check(Seg(traces[0][:-1] + slow_tr), "slow")
    probs = [p for p in probs if 'global_load_dword' not in p.split('->')[-1]]
    for p in sorted(set(probs))[:40]:
        print(p, file=sys.stderr)
    if probs:
        print(len(probs), "problems", file=sys.stderr)
    print("est cycles: pro", est_cycles(pro), "A", [est_cycles(A[w][0]) for w in range(nw)], "trn", est_cycles(trn),
          "B", [est_cycles(B[w][0]) for w in range(nw)], "fin", est_cycles(fin), "total", est_cycles(traces[0]), file=sys.stderr)
    text = Seg(pro + da)
    for name, X, cont, nxt in (('A', A, 'L_trans', trn + db), ('B', B, 'L_final', fin)):
        for w in range(nw):
            if w:
                text.e(".p2align 6")
            text.e(f"L_{name}{w}:"); text.extend(X[w][0])
            if w < nw - 1:
                text.e(f"s_branch {cont}")
        text.e(f"{cont}:"); text.extend(nxt)
    k = [i.text for i in text].index("L_stubs:")
    text[k:k + 1] = stubs()
    hdr = open("standalone__mha_softmax__near_ridge.s.ref").read().split("; Override launch")[0]
    out = hdr + "; @launch grid=(256,1,1) block=(256,1,1) lds=163840\n"
    out += f'.amdgcn_target "amdgcn-amd-amdhsa--gfx950"\n.text\n.globl {KN}\n.p2align 8\n.type {KN},@function\n{KN}:\n'
    for i in text:
        out += ("" if i.kind == 'pseudo' else "    ") + i.text + "\n"
    out += ".p2align 7\n" + "L_code_end:\n"
    for i in slow:
        out += ("" if i.kind == 'pseudo' else "    ") + i.text + "\n"
    out += f'''.section .rodata,"a"
.p2align 6
.amdhsa_kernel {KN}
  .amdhsa_next_free_vgpr 512
  .amdhsa_next_free_sgpr 96
  .amdhsa_accum_offset 256
  .amdhsa_group_segment_fixed_size 0
  .amdhsa_kernarg_size 48
  .amdhsa_user_sgpr_count 2
  .amdhsa_user_sgpr_kernarg_segment_ptr 1
  .amdhsa_system_sgpr_workgroup_id_x 1
.end_amdhsa_kernel
'''
    return out

if __name__ == "__main__":
    path = sys.argv[1]
    for a in sys.argv[2:]:
        k, v = a.split("=")
        assert k in OPT, k
        OPT[k] = int(v)
    open(path, "w").write(build())
```

```python
import sys, struct, math
from asmlib import Ins, check, resolve_waits, apply_waits, check_ring

KN = "standalone__mha_softmax__near_ridge_kernel"
NT = 5
OPT = dict(nochk=0, nosync=0, al=0, cnt=0, wsel=1, qw=32, pollgap=7, force=0, nobar=0, nodma=0, noex=0, nord=0, rot=0, noqb=0, nopf=0, stamps=0, early=0, probe=-1, pa=0, pb=0, kvpol=0, qpol=1, opol=4, olast=4, oapol=4, waves=1, beta=4)
POL = ['', ' nt', ' sc1', ' sc1 nt', ' sc0 sc1', ' sc0 sc1 nt', ' sc0', ' sc0 nt']

def O(t, db): return 32 * t + 4 * db
S0, P0, NM0, VKA, VVA = 160, 176, 192, 212, 216
VDK, VDV, VIDX, VQG, VSL, VOS, VQR, VLN = 224, 225, 226, 227, 228, 229, 230, 231
VX, VT = 232, 240
VLW, VLR, VOW, VTR, VFA, VF, VLT, VPD, VPF, VST = 244, 245, 246, 247, 248, 249, 250, 251, 252, 253
def S(n): return S0 + 8 * (n & 1)
def P(n): return P0 + 4 * (n & 3)
def NM(t): return NM0 + 4 * t
def AQ(t, ks): return 16 * t + 4 * ks
def AK(par, j, ks): return 80 + 32 * par + 16 * j + 4 * ks
def AV(par, db): return 144 + 32 * par + 4 * db
def APAT(a, b): return (228 if a == b else 208) + 4 * a
def AL(p): return 248 + 4 * p
SK, SV, SQ, SO = 12, 16, 20, 24
sOff, sWL, sCnt, sCh, sC, sFlag, sW, sHalf, sHead, sMask, sStage = 28, 29, 30, 31, 32, 34, 35, 36, 37, 38, 39
sT = 40
sTmp = 46
sStamp = 56
sPC = 58
sThr = 76
sLin, sRot, sScr, sExp, sQM, sQE = 66, 67, 68, 69, 74, 75
VBASE = 32768
STAGE, STW = 65536, 21504
FLAGS = STAGE + 4 * STW
LSCR = FLAGS + 256
STAMPS = 0x26000
HEADQ, HEADK = 624 * 256, 1024 * 256
THR = 2.0 ** 60
LAST = 319

def vr(b, n=4): return f"v[{b}:{b+n-1}]"
def ar(b, n=4): return f"a[{b}:{b+n-1}]"
def sr(b, n=4): return f"s[{b}:{b+n-1}]"
def f32(x): return "0x%08x" % struct.unpack("<I", struct.pack("<f", x))[0]

def I(text, **kw):
    i = Ins(text)
    for k, v in kw.items():
        setattr(i, k, v)
    return i

def W(key, vm=None, ds=None):
    return I("s_waitcnt vmcnt(0)", key=key, need_vm=vm, need_ds=ds)

class Seg(list):
    def e(self, *lines):
        for l in lines:
            if isinstance(l, Ins):
                self.append(l)
            elif isinstance(l, int):
                self.append(Ins("s_nop 1"))
            elif l:
                self.append(Ins(l))

def cost(i):
    if i.kind == 'trans' or i.op.startswith('v_permlane'):
        return 8
    if i.kind == 'vmem':
        return 20 if 'store' in i.op else (16 if i.op == 'buffer_load_dwordx4' and 'lds' not in i.mods else 8)
    if i.kind == 'ds':
        return {'ds_write_b128': 20, 'ds_write2_b64': 20, 'ds_write_b64': 12, 'ds_write_b32': 8, 'ds_inc_u32': 8}.get(i.op, 4)
    if i.kind == 'nop':
        return 4 * i.n
    return 4

class Gap:
    def __init__(self, mf):
        self.mf = mf if isinstance(mf, Ins) else Ins(mf)
        self.sc, self.mem, self.val, self.post = [], [], [], []
        self.block = 0
    def nsc(self):
        return sum(i.kind != 'pseudo' for i in self.sc)
    def parts(self):
        return self.block + 4 * max(0, self.nsc() - 1) + sum(map(cost, self.mem)), sum(map(cost, self.val))
    def total(self, a, b):
        return (max(a, 4) if (b and 'smfmac' in self.mf.op) else a) + b
    def used(self):
        return self.total(*self.parts())
    def put(self, i):
        i = i if isinstance(i, Ins) else Ins(i)
        (self.val if i.kind in ('valu', 'trans') else self.mem if i.kind in ('ds', 'vmem') else self.sc).append(i)
    def out(self):
        return [self.mf] + self.sc + self.mem + self.val + self.post

def rank(i):
    return 2 if i.kind in ('valu', 'trans') else 1 if i.kind in ('ds', 'vmem') else 0

def fill(gaps, ops, late=False):
    seq, dist = [], 0
    for o in ops:
        if isinstance(o, int):
            dist += o
        else:
            seq.append((o if isinstance(o, Ins) else Ins(o), dist)); dist = 0
    n, m = len(seq), len(gaps)
    glue = lambda o: o.op in ('s_addc_u32', 's_cselect_b32')
    INF = 10 ** 9
    best = [[None] * (m + 1) for _ in range(n + 1)]
    def go(i, g):
        if i == n:
            return 0, None
        if g >= m:
            return INF, None
        if best[i][g] is not None:
            return best[i][g]
        base, nsc = gaps[g].used(), gaps[g].nsc()
        cands = [(go(i, g + 1)[0], 0)]
        (ua, ub), last = gaps[g].parts(), -1
        for k in range(i, n):
            o, d = seq[k]
            r = rank(o)
            if k > i and (d or r < last):
                break
            if r == 0:
                ua += 4 if nsc else 0
                nsc += 1
            elif r == 1:
                ua += cost(o)
            else:
                ub += cost(o)
            u = gaps[g].total(ua, ub)
            last = r
            if k + 1 < n and glue(seq[k + 1][0]):
                continue
            step = max(1, seq[k + 1][1]) if k + 1 < n else 1
            over = max(0, u - 8) - max(0, base - 8)
            cands.append((over + go(k + 1, g + step)[0], k + 1 - i))
        c = min(cands, key=lambda x: (x[0], x[1] if late else -x[1]))
        best[i][g] = c
        return c
    sys.setrecursionlimit(100000)
    g = seq[0][1] if n else 0
    total = go(0, g)[0]
    assert total < INF, "cannot fill"
    i = 0
    while i < n:
        k = go(i, g)[1]
        for o, _ in seq[i:i + k]:
            gaps[g].put(o)
        i += k
        g += max(1, seq[i][1]) if (k and i < n) else 1
    return total

def flat(gaps):
    s = Seg()
    for g in gaps:
        s.extend(g.out())
    return s

def stamp(s, level=1):
    if OPT['stamps'] >= level:
        s.e(f"s_memrealtime s[{sTmp+4}:{sTmp+5}]", f"s_memtime s[{sTmp+6}:{sTmp+7}]", "s_waitcnt lgkmcnt(0)",
            f"v_mov_b32 v{VST+1}, s{sTmp+4}",
            f"v_mov_b32 v{VST+2}, s{sTmp+6}" if not OPT['cnt'] else f"v_lshrrev_b32 v{VST+2}, 16, v{VIDX}",
            f"ds_write_b64 v{VST}, {vr(VST+1, 2)}", f"v_add_u32 v{VST}, 8, v{VST}", "s_waitcnt lgkmcnt(0)")

def item(i):
    if i >= 310:
        return (i - 310) // 2, 62 + (i & 1)
    return i % 5, i // 5

def k_reads(gb):
    par, slot = gb & 1, gb & 3
    return [I(f"ds_read_b128 {ar(AK(par, j, ks))}, v{VKA+ks} offset:{slot*8192 + j*4096}", tag=('K', gb), use=('K', gb, slot))
            for j in range(2) for ks in range(4)]

def v_reads(gb):
    par, slot = gb & 1, gb & 3
    return [I(f"ds_read_b64_tr_b16 {ar(AV(par, db) + 2*u, 2)}, v{VVA+db} offset:{VBASE + slot*8192 + u*4096}",
              tag=('V', gb), use=('V', gb, slot)) for db in range(8) for u in range(2)]

def dma(gb, part):
    i, isv, slot = part >> 1, part & 1, gb & 3
    m0 = I(f"s_add_u32 m0, s{sWL}, {isv*VBASE + slot*8192 + i*4096}")
    ld = I(f"buffer_load_dwordx4 v{VDV if isv else VDK}, {sr(SV if isv else SK)}, s{sOff} offen{POL[OPT['kvpol']]} lds",
           tag=('D', gb), fill=('V' if isv else 'K', gb, slot, 2), m0=m0.text)
    adv = [I(f"s_add_u32 s{sOff}, s{sOff}, 4096")] if isv else []
    if OPT['rot'] and part == 3:
        adv = [I(f"s_add_u32 s{sLin}, s{sLin}, 8192"), I(f"s_add_u32 s{sOff}, s{sLin}, s{sRot}"),
               I(f"s_and_b32 s{sOff}, s{sOff}, {HEADK-1}"), I(f"s_andn2_b32 s{sTmp+3}, s{sLin}, {HEADK-1}"),
               I(f"s_or_b32 s{sOff}, s{sOff}, s{sTmp+3}")]
    return m0, ld, adv

def qk(n):
    t, gb = item(n)
    return [f"v_mfma_f32_16x16x32_bf16 {vr(S(n)+4*j)}, {ar(AK(gb & 1, j, ks))}, {ar(AQ(t, ks))}, "
            f"{vr(NM(t)) if ks == 0 else vr(S(n)+4*j)}" for j in range(2) for ks in range(4)]

def pv(n):
    t, gb = item(n)
    return [f"v_mfma_f32_16x16x32_bf16 {vr(O(t, db))}, {vr(P(n))}, {ar(AV(gb & 1, db))}, {'0' if gb % 32 == 0 else vr(O(t, db))}"
            for db in range(8)]

def smf(n):
    a, b = item(n - 2)[0], item(n - 1)[0]
    assert a == b or b == (a + 1) % 5
    return f"v_smfmac_f32_16x16x64_bf16 {ar(AL((n - 2) // 160))}, {ar(APAT(a, b))}, {vr(P(n - 2), 8)}, v{VIDX}"

class St:
    def __init__(self, n):
        self.n = n
        a = qk(n + 1) if n + 1 <= LAST else []
        c = pv(n - 1) if n >= 1 else []
        ex = [f"v_exp_f32 v{S(n)+k}, v{S(n)+k}" for k in range(8)] if 0 <= n <= LAST else []
        cv = [f"v_cvt_pk_bf16_f32 v{P(n)+k}, v{S(n)+2*k}, v{S(n)+2*k+1}" for k in range(4)] if ex else []
        L = self.L = [Gap(m) for m in a + c]
        self.G = list(L)
        if len(L) == 16:
            for k in range(8):
                L[2 * k].put(ex[k])
            for k in range(4):
                L[4 * k + 3].put(cv[k])
            if n >= 2 and n % 2 == 0:
                self.G.insert(8, Gap(smf(n)))
        elif n == -1:
            L[7].post.append(Ins("s_nop 3"))
        elif n in (0, LAST):
            for g in range(8):
                if g >= 2 and g % 2 == 0:
                    L[g].put(cv[g // 2 - 1])
                L[g].put(ex[g])
            L[7].post += [Ins("s_nop 0"), Ins(cv[3]), Ins("s_nop 1")]
        else:
            self.G.insert(0, Gap(smf(n)))
    def frm(self, g):
        return self.G[self.G.index(self.L[g]):]
    def upto(self, g):
        return self.G[:self.G.index(self.L[g])]

VG = [5, 13]
STUBS = {}

def sync_check(st, key):
    name = "_".join(map(str, key))
    STUBS[name] = 1
    st.L[0].sc += [I(f"s_cbranch_vccnz L_wait_{name}", sync='check'), Ins(f"L_go_{name}:")]

def window(st, key, w=0, check=True):
    n, L = st.n, st.L
    gb, wi, vg = (n - 1) // 5, (n - 1) % 5, VG[w]
    other = 18 - vg
    if wi < 4:
        rd = (k_reads(gb + 1) + v_reads(gb + 1))[6 * wi:6 * wi + 6]
        sm = [g for g in st.G if g not in L]
        if wi < 3:
            slots = [L[1]] * (2 - len(sm)) + [L[3], L[7]] + sm + [L[11], L[15]]
        else:
            slots = [L[1], L[1], L[3], L[7]] + sm + [L[9], L[9]]
        for g, r in zip(slots, rd):
            g.put(r)
        m0, ld, adv = dma(gb + 4, wi)
        L[vg - 4].put(m0); L[vg].put(ld)
        if len(adv) == 1:
            L[vg + 1].put(adv[0])
        if wi == 0 and check:
            sync_check(st, key)
    else:
        if OPT['rot']:
            for k, a in enumerate(dma(gb + 4, 3)[2]):
                L[(2, 3, 4, 7, 8)[k]].put(a)
        L[0].put(W(key + ('sig',), vm={('D', gb + 2)}, ds={('K', gb + 1), ('V', gb + 1)}))
        L[1].put(I(f"ds_inc_u32 v{VFA}, v{VFA}", sync='signal'))
        pg = OPT['pollgap']
        cg = 13 if vg != 13 else 11
        L[pg].put(I(f"ds_read_b32 v{VF}, v{VFA}", tag=('F', gb), sync='poll'))
        L[6].put(f"s_add_u32 s{sExp}, s{sExp}, 4")
        L[cg].put(W(key + ('poll',), ds={('F', gb)}))
        L[cg].put(I(f"v_cmp_gt_u32 vcc, s{sExp}, v{VF}", sync='cmp'))
        L[15].block = 4
        L[vg].block = 8
    if wi == 2:
        L[15].put(W(key + ('k',), ds={('K', gb + 1)}))
    return st

def stubs():
    s = Seg()
    names = list(STUBS)
    s.e("s_branch L_hop0")
    for h in range(0, len(names), 2):
        s.e(".p2align 6", f"L_hop{h}:", f"s_branch L_hop{h+2}")
        for name in names[h:h + 2]:
            s.e(f"L_wait_{name}:", f"ds_read_b32 v{VF}, v{VFA}", "s_waitcnt lgkmcnt(0)",
                f"v_cmp_gt_u32 vcc, s{sExp}, v{VF}", "s_nop 4" if not OPT['cnt'] else f"v_add_u32 v{VIDX}, s77, v{VIDX}",
                f"s_cbranch_vccnz L_wait_{name}", f"s_branch L_go_{name}")
    s.e(f"L_hop{(len(names) + 1) // 2 * 2}:")
    return s

def scale_ops(x, t, packed):
    r = []
    if packed:
        for k in range(4):
            r += [f"v_lshlrev_b32 v{t+2*k}, 16, v{x+k}", f"v_and_b32 v{t+2*k+1}, s{sMask}, v{x+k}"]
        r += [f"v_pk_mul_f32 {vr(t+2*k, 2)}, {vr(t+2*k, 2)}, {sr(sC, 2)}" for k in range(4)]
        r += [f"v_cvt_pk_bf16_f32 v{x+k}, v{t+2*k}, v{t+2*k+1}" for k in range(4)]
        return r
    for h in range(2):
        for k in range(2):
            r += [f"v_lshlrev_b32 v{t+2*k}, 16, v{x+2*h+k}", f"v_and_b32 v{t+2*k+1}, s{sMask}, v{x+2*h+k}"]
        r += [f"v_mul_f32 v{t+k}, s{sC}, v{t+k}" for k in range(4)]
        r += [f"v_cvt_pk_bf16_f32 v{x+2*h+k}, v{t+2*k}, v{t+2*k+1}" for k in range(2)]
    return r

QM0 = f"s_mov_b32 m0, s{sQM}"
QADV = [f"s_add_u32 s{sCh}, s{sCh}, 1024", f"s_add_u32 s{sQM}, s{sQM}, 1024", f"s_min_u32 s{sQM}, s{sQM}, s{sQE}"]
def qb_load(i):
    return I(f"buffer_load_dwordx4 v{VQG}, {sr(SQ)}, s{sCh} offen{POL[OPT['qpol']]} lds", tag=('QB', i), m0=QM0)

def q_frag_reads(t, adr):
    return [I(f"ds_read_b128 {ar(AQ(t, ks))}, v{adr[ks]} offset:{4096*t}", tag=('Q', t)) for ks in range(4)]

def srd_rows(srd, ptr, p):
    a, b, c = sTmp, sTmp + 1, sTmp + 2
    return [f"s_xor_b32 s{b}, s{sHalf}, {p}", f"s_mul_i32 s{b}, s{b}, {320*256}",
            f"s_mul_i32 s{c}, s{sW}, {80*256}", f"s_add_u32 s{b}, s{b}, s{c}",
            f"s_add_u32 s{a}, s{sHead}, {p}", f"s_mul_i32 s{a}, s{a}, {HEADQ}", f"s_add_u32 s{a}, s{a}, s{b}",
            f"s_add_u32 s{srd}, s{ptr}, s{a}", f"s_addc_u32 s{srd+1}, s{ptr+1}, 0",
            f"s_sub_u32 s{b}, {HEADQ}, s{b}", f"s_min_u32 s{srd+2}, s{b}, {80*256}", f"s_mov_b32 s{srd+3}, 0x20000"]

def mref_mfma(t):
    return [f"v_mfma_f32_16x16x32_bf16 {vr(NM(t))}, {ar(AK(0, 0, ks))}, {ar(AQ(t, ks))}, {'0' if ks == 0 else vr(NM(t))}"
            for ks in range(4)]

def mref_valu(t):
    n = NM(t)
    r = [f"v_max3_f32 v{n}, v{n}, v{n+1}, v{n+2}", f"v_max_f32 v{n}, v{n}, v{n+3}"]
    for sw in ("v_permlane16_swap_b32", "v_permlane32_swap_b32"):
        r += [f"v_mov_b32 v{n+1}, v{n}", 2, f"{sw} v{n}, v{n+1}", f"v_max_f32 v{n}, v{n}, v{n+1}"]
    return r + [f"v_sub_f32 v{n+k}, {float(-OPT['beta'])}, v{n}" for k in (3, 2, 1, 0)]

def RL(t): return VX + 4 * (t & 1)

def l_ops(p, t, key):
    x, y = (VQG if t == 3 else VLT), VT + 3
    a = AL(p) + 2 * (t & 1)
    return [f"v_accvgpr_read_b32 v{x}, a{a}", f"v_accvgpr_read_b32 v{y}, a{a+1}", f"v_add_f32 v{x}, v{x}, v{y}",
            f"v_rcp_f32 v{y}, v{x}", f"ds_write_b32 v{VLW}, v{y}",
            I(f"ds_read_b128 {vr(RL(t))}, v{VLR} offset:{64*(t >> 1)}", tag=key + ('RL', t))]

def flag_ops(bit):
    return [f"v_add_f32 v{VLT}, v{VLT}, v{VQG}", f"v_cmp_ngt_f32 s[{sTmp}:{sTmp+1}], s{sThr}, v{VLT}", 2,
            f"s_cmp_lg_u64 s[{sTmp}:{sTmp+1}], 0", f"s_cselect_b32 s{sTmp}, {bit}, 0", f"s_or_b32 s{sFlag}, s{sFlag}, s{sTmp}"]

def pk_burst(t):
    return [Ins(f"v_pk_mul_f32 {vr(O(t, db)+2*k, 2)}, {vr(O(t, db)+2*k, 2)}, {vr(RL(t)+2*k, 2)}")
            for db in range(8) for k in range(2)]

def cvt_write(t):
    r = []
    for u in range(4):
        for db in (2 * u, 2 * u + 1):
            b = O(t, db)
            r += [f"v_cvt_pk_bf16_f32 v{b+k}, v{b+2*k}, v{b+2*k+1}" for k in range(2)]
        r.append(f"ds_write2_b64 v{VOW}, {vr(O(t, 2*u), 2)}, {vr(O(t, 2*u+1), 2)} offset0:{32*u} offset1:{32*u+16}")
    return r + [f"v_add_u32 v{VOW}, 4096, v{VOW}"]

def prologue():
    s = Seg()
    T = 72
    if OPT['early']:
        s.e("s_memrealtime s[64:65]")
    s.e("s_load_dwordx4 s[4:7], s[0:1], 0", "s_load_dwordx4 s[8:11], s[0:1], 16")
    if OPT['stamps']:
        s.e(f"s_load_dwordx2 s[{sStamp}:{sStamp+1}], s[0:1], 40")
    s.e("s_cmp_ge_u32 s2, 256", "s_cbranch_scc1 L_end")
    Wv, L, Q16, G, R, X, Y = T, VLN, T + 2, T + 3, T + 4, T + 5, T + 6
    s.e(f"v_lshrrev_b32 v{Wv}, 6, v0", f"v_and_b32 v{L}, 63, v0", f"v_lshlrev_b32 v{VPF}, 7, v0",
        f"v_readfirstlane_b32 s{sW}, v{Wv}", f"s_getpc_b64 s[{sPC}:{sPC+1}]", "L_pc:",
        f"v_min_u32 v{VPD}, L_trans-L_pc, v{VPF}",
        I(f"global_load_dword v{VPD}, v{VPD}, s[{sPC}:{sPC+1}]", tag='pf'))
    s.e(f"s_and_b32 s{sHead}, s2, 7", f"s_lshl_b32 s{sHead}, s{sHead}, 5",
        f"s_lshr_b32 s3, s2, 3", f"s_and_b32 s{sHalf}, s3, 1", f"s_and_b32 s3, s3, 30",
        f"s_add_u32 s{sHead}, s{sHead}, s3", f"s_lshl_b32 s{sWL}, s{sW}, 10")
    s.e(f"v_and_b32 v{Q16}, 15, v{L}", f"v_lshrrev_b32 v{G}, 4, v{L}",
        f"v_lshlrev_b32 v{X}, 2, v{G}", f"v_xor_b32 v{X}, v{Q16}, v{X}", f"v_lshlrev_b32 v{X}, 4, v{X}",
        f"v_lshl_add_u32 v{VQG}, v{G}, 8, v{X}",
        f"v_lshl_add_u32 v{R}, v{Wv}, 2, v{G}",
        f"v_xor_b32 v{X}, v{Q16}, v{R}", f"v_lshlrev_b32 v{X}, 4, v{X}", f"v_lshl_add_u32 v{VDK}, v{R}, 8, v{X}",
        f"v_and_b32 v{X}, 7, v{R}", f"v_lshlrev_b32 v{X}, 1, v{X}", f"v_xor_b32 v{X}, v{Q16}, v{X}",
        f"v_lshlrev_b32 v{X}, 4, v{X}", f"v_lshl_add_u32 v{VDV}, v{R}, 8, v{X}")
    s.e(f"s_mul_i32 s3, s{sHead}, {HEADK}", f"s_mov_b32 s{SK+2}, {2*HEADK}", f"s_mov_b32 s{SK+3}, 0x20000",
        f"s_mov_b32 s{SV+2}, {2*HEADK}", f"s_mov_b32 s{SV+3}, 0x20000", f"s_mov_b32 s{sOff}, 0")
    if OPT['rot']:
        s.e(f"s_lshr_b32 s{sRot}, s{sHead}, 1", f"s_mul_i32 s{sRot}, s{sRot}, {OPT['rot']}", f"s_and_b32 s{sRot}, s{sRot}, 31",
            f"s_lshl_b32 s{sRot}, s{sRot}, 13", f"s_mov_b32 s{sOff}, s{sRot}", f"s_mov_b32 s{sLin}, 0")
    for t in range(NT):
        s.e(f"s_mov_b32 s{sT+t}, {4096*t}")
    rows = srd_rows(SQ, 4, 0)
    s.e(*rows[:7], *rows[9:])
    if OPT['stamps']:
        s.e(f"v_lshlrev_b32 v{VST}, 8, v{Wv}", f"v_add_u32 v{VST}, {STAMPS}, v{VST}")
    s.e("s_waitcnt lgkmcnt(0)", *rows[7:9])
    def blk(gb):
        for p in range(4):
            m0, ld, adv = dma(gb, p)
            s.e(m0, "s_nop 0", ld, *adv)
    def qload(t):
        for c in range(4):
            s.e(I(f"buffer_load_dwordx4 {vr(80 + 16*t + 4*c)}, v{VQG}, {sr(SQ)}, s{sT+t} offen offset:{1024*c}{POL[OPT['qpol']]}",
                  tag=('QA', t)))
    adr = [VQR, VT, VT + 1, VT + 2]
    VSW = VX
    def qwait(t):
        s.e(W(('pro', 'q', t), vm={('QA', t)}))
    def qprep(t):
        for c in range(4):
            s.e(*scale_ops(80 + 16 * t + 4 * c, 64, True))
        for c in range(4):
            s.e(f"ds_write_b128 v{VSW}, {vr(80 + 16*t + 4*c)} offset:{4096*t + 1024*c}")
        s.e(*q_frag_reads(t, adr))
    def mref(t):
        s.e(W(('pro', 'm', t), ds={('Q', t), ('K', 0)}), *mref_mfma(t), "s_nop 7", *mref_valu(t), "s_nop 1")
    qload(0)
    s.e(f"s_add_u32 s{SK}, s6, s3", f"s_addc_u32 s{SK+1}, s7, 0", f"s_add_u32 s{SV}, s8, s3", f"s_addc_u32 s{SV+1}, s9, 0")
    blk(0); qload(1)
    stamp(s)
    s.e(f"v_add_u32 v{VPF}, L_trans-L_pc, v{VPF}", f"v_min_u32 v{VPF}, L_final-L_pc, v{VPF}")
    s.e(f"s_mov_b32 s{sFlag}, {OPT['force']}", f"s_mov_b32 s{sMask}, 0xffff0000",
        f"s_mov_b32 s{sC}, {f32(math.log2(math.e) / math.sqrt(128.0))}", f"s_mov_b32 s{sC+1}, s{sC}",
        f"s_mul_i32 s{sStage}, s{sW}, {STW}", f"s_add_u32 s{sStage}, s{sStage}, {STAGE}")
    for ks in range(4):
        s.e(f"v_add_u32 v{X}, {4*ks}, v{G}", f"v_xor_b32 v{X}, v{X}, v{Q16}", f"v_lshlrev_b32 v{X}, 4, v{X}",
            f"v_lshl_add_u32 v{VKA+ks}, v{Q16}, 8, v{X}")
    s.e(f"v_lshrrev_b32 v{X}, 2, v{L}", f"v_and_b32 v{Y}, 3, v{L}",
        f"v_lshlrev_b32 v{R}, 4, v{X}", f"v_lshl_add_u32 v{VOS}, v{Y}, 8, v{R}",
        f"v_lshlrev_b32 v{R}, 4, v{G}", f"v_lshl_add_u32 v{R}, v{Q16}, 8, v{R}", f"v_lshl_add_u32 v{R}, v{Y}, 6, v{R}",
        f"v_add_u32 v{VQR}, s{sStage}, v{R}", f"v_lshl_add_u32 v{VSW}, v{L}, 4, s{sStage}",
        f"v_lshl_add_u32 v{VSL}, v{L}, {2 if OPT['qw'] == 32 else 3}, s{sStage}",
        f"v_lshl_add_u32 v{VTR}, v{G}, 8, s{sStage}", f"v_lshl_add_u32 v{VTR}, v{Y}, 6, v{VTR}",
        f"v_bfe_u32 v{R}, v{L}, 2, 2", f"v_lshl_add_u32 v{VTR}, v{R}, 3, v{VTR}",
        f"v_lshl_add_u32 v{VOW}, v{Q16}, 3, s{sStage}", f"v_lshl_add_u32 v{VOW}, v{G}, 10, v{VOW}",
        f"s_lshl_b32 s{sScr}, s{sW}, 8", f"s_add_u32 s{sScr}, s{sScr}, {LSCR}",
        f"v_lshl_add_u32 v{VLW}, v{L}, 2, s{sScr}", f"v_lshl_add_u32 v{VLR}, v{G}, 4, s{sScr}",
        f"v_lshlrev_b32 v{VFA}, 2, v{L}", f"v_add_u32 v{VFA}, {FLAGS}, v{VFA}", f"v_mov_b32 v{VF}, 0",
        f"ds_write_b32 v{VFA}, v{VF}", f"s_mov_b32 s{sExp}, 0", "s_mov_b32 s77, 0x10000" if OPT['cnt'] else "", f"s_mov_b32 s{sThr}, {f32(THR)}",
        f"v_lshlrev_b32 v{Y}, 3, v{Y}", f"v_lshl_add_u32 v{Y}, v{X}, 8, v{Y}", f"v_and_b32 v{X}, 7, v{X}")
    for db in range(8):
        s.e(f"v_xor_b32 v{R}, {db}, v{X}", f"v_lshl_add_u32 v{VVA+db}, v{R}, 5, v{Y}")
    s.e(f"v_and_b32 v{X}, 1, v{L}", f"v_mul_u32_u24 v{X}, 0xaaaa, v{X}", f"v_add_u32 v{VIDX}, 0x4444, v{X}",
        f"v_lshrrev_b32 v{X}, 1, v{Q16}", f"v_lshrrev_b32 v{Y}, 5, v{L}", f"v_sub_u32 v{Y}, v{X}, v{Y}",
        f"v_cmp_gt_i32 vcc, 0, v{Y}", f"v_mov_b32 v{R}, 0x3f803f80", f"v_cmp_eq_u32 s[{sTmp}:{sTmp+1}], 5, v{X}",
        f"v_cndmask_b32 v{Y}, v{Y}, 4, vcc", "s_nop 0", f"v_cndmask_b32 v{Y}, v{Y}, 7, s[{sTmp}:{sTmp+1}]")
    for a in range(NT):
        s.e(f"v_cmp_eq_u32 vcc, {a}, v{Y}", f"v_cmp_eq_u32 s[{sTmp}:{sTmp+1}], {a}, v{X}", "s_nop 0",
            f"v_cndmask_b32 v{T+7}, 0, v{R}, vcc", f"v_cndmask_b32 v{T+1}, 0, v{R}, s[{sTmp}:{sTmp+1}]")
        for r in range(4):
            s.e(f"v_accvgpr_write_b32 a{APAT(a, -1)+r}, v{T+7}", f"v_accvgpr_write_b32 a{APAT(a, a)+r}, v{T+1}")
    for k in range(8):
        s.e(f"v_accvgpr_write_b32 a{AL(0)+k}, 0")
    for ks in range(1, 4):
        s.e(f"v_xor_b32 v{adr[ks]}, {64*ks}, v{VQR}")
    s.e("L_stubs:")
    qwait(0); stamp(s); qload(2); qprep(0)
    s.e(W(('pro', 'b0'), vm={('D', 0)}), "s_barrier", *k_reads(0))
    qload(3)
    s.e(*v_reads(0))
    mref(0)
    s.extend(flat(St(-1).G))
    qwait(1); qload(4); qprep(1); mref(1)
    s.extend(flat(St(0).G))
    qwait(2); blk(1); qprep(2); mref(2)
    s.extend(flat(St(1).G))
    qwait(3); blk(2); qprep(3); mref(3)
    s.extend(flat(St(2).G))
    qwait(4); blk(3); qprep(4); mref(4)
    stamp(s)
    s.e(W(('pro', 'b1'), vm={('D', 1)}), "s_barrier")
    st = {n: St(n) for n in range(3, 16)}
    fill(st[3].upto(11), k_reads(1))
    st[3].L[15].put(W(('pro', 'k1'), ds={('K', 1)}))
    d = [dma(4, p) for p in range(4)]
    for p, (n, g) in enumerate(((3, 13), (4, 5), (4, 13), (5, 5))):
        st[n].L[g - 3].put(d[p][0]); st[n].L[g].put(d[p][1])
        for k, a in enumerate(d[p][2]):
            st[n].L[g + 1 + k].put(a)
    st[5].L[14].put(W(('pro', 'b2'), vm={('D', 2)}, ds={('V', 1)}))
    st[5].L[15].put("s_barrier"); st[5].L[15].block = 4
    fill(st[3].frm(11) + st[4].G + st[5].upto(10), v_reads(1))
    for n in range(6, 16):
        window(st[n], ('peel', n), check=(n > 6))
    fill(st[6].G + st[7].G, srd_rows(SQ, 4, 1) + [
        f"s_mov_b32 s{sCh}, {0x100000 if OPT['noqb'] else 0}", f"s_mov_b32 s{sCnt}, 7",
        f"s_mov_b32 s{sQM}, s{sStage}", f"s_add_u32 s{sQE}, s{sStage}, 20480"])
    for i, n in enumerate((8, 11, 13)):
        st[n].L[9].put(QM0); st[n].L[13].put(qb_load(i))
        if i < 2:
            fill(st[n + 1].frm(7), QADV)
    for n in range(3, 16):
        s.extend(flat(st[n].G))
    return s

def dispatch(name):
    s = Seg()
    if OPT['waves'] == 2:
        s.e(f"s_bitcmp1_b32 s{sW}, {OPT['wsel']}", f"s_cbranch_scc1 L_{name}1")
        return s
    for w in range(1, OPT['waves']):
        s.e(f"s_cmp_eq_u32 s{sW}, {w}", f"s_cbranch_scc1 L_{name}{w}")
    return s

def body(name, n0, w, extras):
    st = [window(St(n0 + k), (name, w, k), w) for k in range(20)]
    vg = VG[w]
    tot = 0
    if not OPT['nopf']:
        st[4].L[vg].block = 0
        st[4].L[vg].put(I(f"global_load_dword v{VPD}, v{VPD}, s[{sPC}:{sPC+1}]", tag='pf'))
        tot += fill(st[2].G + st[3].G, [f"s_cmp_eq_u32 s{sCnt}, 1", f"s_cselect_b32 s{sScr}, -1, 0", 1,
                                        f"v_and_b32 v{VPD}, s{sScr}, v{VPF}"])
    st[19].L[10].put(f"s_sub_u32 s{sCnt}, s{sCnt}, 1")
    st[19].L[12].put(f"s_cmp_lg_u32 s{sCnt}, 0")
    ops = []
    for c in range(3):
        o, slot, m0, adv = extras(c)
        if OPT['noex']:
            continue
        g = st[9 + 5 * c].L
        g[vg].block = 0
        g[vg].put(slot)
        if m0:
            g[vg - 4].put(m0)
        tot += fill(st[7 + 5 * c].G, adv)
        if name == 'A':
            ops += o
        else:
            tot += fill(st[5 + 5 * c].G + st[6 + 5 * c].G + st[7 + 5 * c].G, o)
    tot += fill(sum((x.G for x in st), []), ops) if ops else 0
    s = Seg()
    stamp(s, 2)
    s.extend(flat(sum((x.G for x in st), [])))
    drop = lambda i: ((OPT['nodma'] and hasattr(i, 'fill')) or (OPT['nord'] and hasattr(i, 'use')) or
                      (OPT['nochk'] and getattr(i, 'sync', '') == 'check') or
                      (OPT['nosync'] and getattr(i, 'sync', '') in ('check', 'poll', 'cmp')))
    s = Seg(i for i in s if not drop(i))
    s.e(f"s_cbranch_scc1 L_{name}{w}")
    return s

def body_a(trip, w):
    def extras(c):
        i = 3 * trip + c
        x = VX + 4 * (c & 1)
        sc = scale_ops(x, VT, False)
        if OPT['qw'] == 32:
            rd = [f"ds_read2st64_b32 {vr(x+2*h, 2)}, v{VSL} offset0:{4*c+2*h} offset1:{4*c+2*h+1}" for h in range(2)]
            wr = [[f"ds_write_b32 v{VSL}, v{x+2*h+k} offset:{1024*c + 256*(2*h+k)}" for k in range(2)] for h in range(2)]
        else:
            rd = [f"ds_read_b64 {vr(x+2*h, 2)}, v{VSL} offset:{1024*c + 512*h}" for h in range(2)]
            wr = [[f"ds_write_b64 v{VSL}, {vr(x+2*h, 2)} offset:{1024*c + 512*h}"] for h in range(2)]
        ops = [W(('A', w, 'q', c), vm={('QB', i)})] + [I(r, tag=('QR', i)) for r in rd]
        ops += [6, W(('A', w, 'r', c), ds={('QR', i)})] + sc[:10] + wr[0] + sc[10:] + wr[1]
        ops += [f"v_add_u32 v{VSL}, 3072, v{VSL}"] if c == 2 else []
        return ops, qb_load(i + 3), QM0, QADV
    return body('A', 16 + 20 * trip, w, extras)

def body_b(trip, w):
    def extras(c):
        i = 3 * trip + c
        ops = [I(f"ds_read_b64_tr_b16 {vr(VX+2*h, 2)}, v{VTR} offset:{1024*c + 32*h}", tag=('OA', i)) for h in range(2)]
        ops += [12, W(('B', w, 'o', c), ds={('OA', i)})]
        ops += [f"v_add_u32 v{VTR}, 3072, v{VTR}"] if c == 2 else []
        st = I(f"buffer_store_dwordx4 {vr(VX)}, v{VOS}, {sr(SO)}, s{sCh} offen{POL[OPT['oapol']]}")
        return ops, st, None, QADV[:1]
    return body('B', 166 + 20 * trip, w, extras)

def transition():
    s = Seg()
    stamp(s)
    st = {n: window(St(n), ('tr', n)) for n in range(156, 166)}
    adr = [VQR, VT, VT + 1, VT + 2]
    st[160].L[VG[0]].block = st[165].L[VG[0]].block = 0
    fill(st[156].G, [f"v_xor_b32 v{adr[ks]}, {64*ks}, v{VQR}" for ks in range(1, 4)] +
         q_frag_reads(0, adr) + q_frag_reads(1, adr))
    for t in range(2, 5):
        fill(st[155 + t].upto(10), q_frag_reads(t, adr))
    for t in range(NT):
        x = st[157 + t]
        x.L[13].put(W(('tr', 'mq', t), ds={('Q', t), ('K', 32)}))
        k = x.G.index(x.L[14])
        x.G[k:k] = [Gap(m) for m in mref_mfma(t)]
    for t in range(NT):
        fill(st[158 + t].L[2:15], mref_valu(t))
    lstep = [157, 159, 160, 161, 162]
    for t in range(NT):
        fill(st[lstep[t]].G[:-8], l_ops(0, t, ('tr',)))
    pstep = [157, 159, 160, 162, 163]
    for t in range(NT):
        g = st[pstep[t]].G[-2]
        g.sc.append(W(('tr', 'rl', t), ds={('tr', 'RL', t)}))
        g.block -= 8
        g.post += pk_burst(t)
    win = [st[158].G + st[159].G, st[160].G + st[161].upto(6), st[161].frm(6) + st[162].G,
           st[163].G + st[164].upto(4), st[164].frm(4) + st[165].upto(6)]
    for t in range(NT):
        fill(win[t], cvt_write(t))
    fill(st[163].G + st[164].G, srd_rows(SO, 10, 0) + [f"s_mov_b32 s{sCh}, -1024", f"s_mov_b32 s{sCnt}, 7"])
    fill(st[165].frm(6)[:-3], flag_ops(1))
    fill(st[165].frm(6), [f"v_lshlrev_b32 v{VPF}, 7, v{VLN}", f"v_add_u32 v{VPF}, L_final-L_pc, v{VPF}",
                          f"v_min_u32 v{VPF}, L_code_end-L_pc-4, v{VPF}"])
    for n in range(156, 166):
        s.extend(flat(st[n].G))
    stamp(s)
    return s

def finale():
    s = Seg()
    stamp(s)
    st = {n: St(n) for n in range(306, 321)}
    sync_check(st[306], ('fin',))
    fill(st[306].frm(1) + st[307].G + st[308].upto(6), k_reads(62) + v_reads(62))
    st[308].L[6].put(W(('fin', 'b'), vm={('D', 63)}))
    st[308].L[7].put("s_barrier"); st[308].L[7].block = 4
    st[308].L[15].put(W(('fin', 'k62'), ds={('K', 62)}))
    fill(st[308].frm(8) + st[309].upto(10), k_reads(63))
    st[309].L[15].put(W(('fin', 'k63'), ds={('K', 63)}))
    v63 = v_reads(63)
    for g, k in ((9, 2), (11, 1), (13, 2), (15, 1)):
        for _ in range(k):
            st[310].L[g].put(v63.pop(0))
    fill(st[311].G, v63)
    st[312].L[6].put(W(('fin', 'v63'), ds={('V', 63)}))
    fill(st[309].frm(10) + st[310].upto(8), [f"v_add_u32 v{VOW}, {-5*4096}, v{VOW}", f"v_add_u32 v{VTR}, {-7*3072}, v{VTR}"])
    fill(st[306].frm(1) + st[307].G, srd_rows(SO, 10, 1))
    st[318].L[15].post.append(Ins("s_nop 1"))
    def readback(t):
        return [I(f"ds_read_b64_tr_b16 {vr(O(t, c)+2*h, 2)}, v{VTR} offset:{4096*t + 1024*c + 32*h}", tag=('OB', t, c))
                for c in range(4) for h in range(2)]
    def stores(t, gapn):
        r = []
        for c in range(4):
            pol = POL[OPT['olast'] if t == 4 else OPT['opol']]
            r += [W(('fin', 'o', t, c), ds={('OB', t, c)}),
                  f"buffer_store_dwordx4 {vr(O(t, c))}, v{VOS}, {sr(SO)}, s{sT+t} offen offset:{1024*c}{pol}"]
            if gapn:
                r.append(gapn)
        return r
    for t in range(4):
        n = 312 + 2 * t
        nxt = st[n + 1]
        cut = 8 if t < 3 else 5
        fill(st[n].frm(14) + nxt.G[:cut - 3], l_ops(1, t, ('fin',)))
        g = nxt.G[cut]
        g.sc.append(W(('fin', 'rl', t), ds={('fin', 'RL', t)}))
        g.block -= 8
        g.post += pk_burst(t)
        if t < 3:
            fill(nxt.G[cut + 1:] + st[n + 2].upto(13), cvt_write(t) + readback(t))
            fill(st[n + 2].frm(13) + st[n + 3].G, [2] + stores(t, 2))
        else:
            fill(nxt.G[cut + 1:] + st[320].G[:5], cvt_write(t) + readback(t))
    fill(st[320].G[5:], l_ops(1, 4, ('fin',)))
    for n in range(306, 321):
        s.extend(flat(st[n].G))
    stamp(s)
    s.e(*stores(3, 0), W(('fin', 'rl', 4), ds={('fin', 'RL', 4)}), *pk_burst(4), *cvt_write(4)[:-1], *readback(4),
        *flag_ops(2), *stores(4, 0))
    stamp(s)
    if OPT['stamps']:
        s.e("s_waitcnt vmcnt(0)")
        stamp(s)
        s.e(f"v_lshlrev_b32 v0, 2, v{VLN}",
            f"s_lshl_b32 s3, s{sW}, 8", "v_add_u32 v0, s3, v0", f"v_add_u32 v1, {STAMPS}, v0",
            "ds_read_b32 v2, v1", "s_lshl_b32 s3, s2, 10", "v_add_u32 v0, s3, v0", "s_waitcnt lgkmcnt(0)",
            f"global_store_dword v0, v2, s[{sStamp}:{sStamp+1}]")
    if OPT['probe'] >= 0:
        a, b = OPT['pa'], OPT['pb']
        s.e(f"v_mov_b32 v4, s{sW}", "v_lshlrev_b32 v0, 8, v4", f"v_add_u32 v0, {STAMPS}, v0",
            "ds_read_b64 v[2:3], v0", f"ds_read_b64 v[4:5], v0 offset:{8*a}", f"ds_read_b64 v[6:7], v0 offset:{8*b}",
            "s_waitcnt lgkmcnt(0)", "v_sub_u32 v6, v6, v4", "v_sub_u32 v7, v7, v5")
        s.e(["v_mov_b32 v6, 5000", "v_lshlrev_b32 v6, 2, v6", "v_lshrrev_b32 v6, 3, v7"][OPT['probe']])
        s.e("v_add_u32 v6, 10000, v6", "s_nop 1", "v_readfirstlane_b32 s60, v6", "v_readfirstlane_b32 s61, v2", "s_nop 3",
            "s_mov_b32 s61, s64" if OPT['early'] else "s_nop 0",
            "L_spin:", "s_memrealtime s[62:63]", "s_waitcnt lgkmcnt(0)", "s_sub_u32 s62, s62, s61",
            "s_cmp_lt_u32 s62, s60", "s_cbranch_scc1 L_spin")
    s.e(f"s_cmp_lg_u32 s{sFlag}, 0", "s_cbranch_scc1 L_slow", "L_end:", "s_endpgm")
    return s

def slow_path():
    QF, KF, VF, SS, PP, NN, OO = 0, 16, 48, 80, 88, 92, 96
    AG, AL_, AT, AO, MX, LS, T = 128, 129, 130, 131, 132, 133, 136
    sP, sTile, sKo, sEnd = 70, 71, 72, 73
    head, tile, mx, mid, blk, out = Seg(), Seg(), Seg(), Seg(), Seg(), Seg()
    head.e("L_slow:", "s_waitcnt vmcnt(0) lgkmcnt(0)",
           f"v_and_b32 v{T}, 15, v{VLN}", f"v_lshrrev_b32 v{T+1}, 4, v{VLN}",
           f"v_lshlrev_b32 v{AG}, 4, v{T+1}", f"v_lshl_add_u32 v{AG}, v{T}, 8, v{AG}",
           f"v_lshlrev_b32 v{AO}, 3, v{T+1}", f"v_lshl_add_u32 v{AO}, v{T}, 8, v{AO}",
           f"v_lshlrev_b32 v{AL_}, 4, v{VLN}",
           f"v_lshrrev_b32 v{T}, 2, v{VLN}", f"v_and_b32 v{T+1}, 3, v{VLN}",
           f"v_lshl_add_u32 v{AT}, v{T}, 8, s{sStage}", f"v_lshl_add_u32 v{AT}, v{T+1}, 3, v{AT}",
           f"s_mov_b32 s{sP}, 0",
           "L_slow_pass:", f"s_lshr_b32 s{sTmp}, s{sFlag}, s{sP}", f"s_bitcmp1_b32 s{sTmp}, 0", "s_cbranch_scc0 L_slow_next",
           *srd_rows(SQ, 4, f"s{sP}"), *srd_rows(SO, 10, f"s{sP}"), f"s_mov_b32 s{sTile}, 0")
    tile.e("L_slow_tile:")
    tile.e(*[f"buffer_load_dwordx4 {vr(QF+4*ks)}, v{AG}, {sr(SQ)}, s{sTile} offen offset:{64*ks}" for ks in range(4)],
           f"s_mul_i32 s{sKo}, s{sP}, {HEADK}", f"s_add_u32 s{sEnd}, s{sKo}, {HEADK}",
           f"v_mov_b32 v{MX}, 0xff800000", "s_waitcnt vmcnt(0)")
    for ks in range(4):
        tile.e(*scale_ops(QF + 4 * ks, T, True))
    def chain(d, k, c):
        return [f"v_mfma_f32_16x16x32_bf16 {vr(d)}, {vr(k+4*ks)}, {vr(QF+4*ks)}, {c if ks == 0 else vr(d)}" for ks in range(4)]
    def across(op, r):
        x = []
        for sw in ("v_permlane16_swap_b32", "v_permlane32_swap_b32"):
            x += [f"v_mov_b32 v{T}, v{r}", "s_nop 1", f"{sw} v{r}, v{T}", f"{op} v{r}, v{r}, v{T}"]
        return x
    mx.e("L_slow_max:")
    mx.e(*[f"buffer_load_dwordx4 {vr(KF+4*ks)}, v{AG}, {sr(SK)}, s{sKo} offen offset:{64*ks}" for ks in range(4)],
         f"s_add_u32 s{sKo}, s{sKo}, 4096", "s_waitcnt vmcnt(0)", *chain(SS, KF, "0"), "s_nop 7",
         f"v_max3_f32 v{MX}, v{MX}, v{SS}, v{SS+1}", f"v_max3_f32 v{MX}, v{MX}, v{SS+2}, v{SS+3}",
         f"s_cmp_lt_u32 s{sKo}, s{sEnd}", "s_cbranch_scc1 L_slow_max")
    mid.e(*across("v_max_f32", MX), *[f"v_sub_f32 v{NN+k}, 0, v{MX}" for k in range(4)],
          *[f"v_mov_b32 v{OO+k}, 0" for k in range(32)], f"v_mov_b32 v{LS}, 0", f"s_mul_i32 s{sKo}, s{sP}, {HEADK}")
    blk.e("L_slow_blk:")
    for j in range(2):
        blk.e(f"s_add_u32 m0, s{sStage}, {4096*j}",
              *[f"buffer_load_dwordx4 {vr(KF+16*j+4*ks)}, v{AG}, {sr(SK)}, s{sKo} offen offset:{64*ks}" for ks in range(4)],
              *[f"buffer_load_dwordx4 v{AL_}, {sr(SV)}, s{sKo} offen offset:{1024*i} lds" for i in range(4)],
              f"s_add_u32 s{sKo}, s{sKo}, 4096")
    blk.e("s_waitcnt vmcnt(0)")
    blk.e(*[f"ds_read_b64_tr_b16 {vr(VF+4*db+2*u, 2)}, v{AT} offset:{4096*u + 32*db}" for db in range(8) for u in range(2)])
    blk.e(*chain(SS, KF, vr(NN)), *chain(SS + 4, KF + 16, vr(NN)), "s_nop 7",
          *[f"v_exp_f32 v{SS+k}, v{SS+k}" for k in range(8)], "s_nop 0",
          *[f"v_add_f32 v{LS}, v{LS}, v{SS+k}" for k in range(8)],
          *[f"v_cvt_pk_bf16_f32 v{PP+k}, v{SS+2*k}, v{SS+2*k+1}" for k in range(4)],
          "s_waitcnt lgkmcnt(0)", "s_nop 0",
          *[f"v_mfma_f32_16x16x32_bf16 {vr(OO+4*db)}, {vr(VF+4*db)}, {vr(PP)}, {vr(OO+4*db)}" for db in range(8)],
          f"s_cmp_lt_u32 s{sKo}, s{sEnd}", "s_cbranch_scc1 L_slow_blk")
    out.e(*across("v_add_f32", LS), f"v_rcp_f32 v{LS}, v{LS}", "s_nop 0",
          *[f"v_mul_f32 v{OO+k}, v{OO+k}, v{LS}" for k in range(32)])
    for db in range(8):
        b = OO + 4 * db
        out.e(f"v_cvt_pk_bf16_f32 v{b}, v{b}, v{b+1}", f"v_cvt_pk_bf16_f32 v{b+1}, v{b+2}, v{b+3}",
              f"buffer_store_dwordx2 {vr(b, 2)}, v{AO}, {sr(SO)}, s{sTile} offen offset:{32*db}")
    out.e(f"s_add_u32 s{sTile}, s{sTile}, 4096", f"s_cmp_lt_u32 s{sTile}, {4096*NT}", "s_cbranch_scc1 L_slow_tile")
    end = Seg()
    end.e("L_slow_next:", f"s_add_u32 s{sP}, s{sP}, 1", f"s_cmp_lt_u32 s{sP}, 2", "s_cbranch_scc1 L_slow_pass", "s_endpgm")
    once = tile + mx + mx + mid + blk + blk + out
    return Seg(head + tile + mx + mid + blk + out + end), Seg(head + once + once + end)

def est_cycles(seq):
    tot, cur, nsc, inm = 0, 0, 0, False
    for i in seq:
        if i.kind == 'pseudo':
            continue
        if i.kind == 'mfma':
            tot += max(16, cur) if inm else cur
            cur, nsc, inm, sm = 8, 0, True, 'smfmac' in i.op
        elif rank(i) == 0:
            nsc += 1
            cur += cost(i) - (4 if (inm and nsc == 1 and cur == 8) else 0)
        else:
            if i.op.startswith('v_pk') and inm:
                cur = max(cur, 24)
            if inm and sm and rank(i) == 2:
                cur = max(cur, 12)
            cur += cost(i)
    return tot + (max(16, cur) if inm else cur)

def check_m0(trace):
    cur, probs = None, []
    for i in trace:
        if 'm0' in i.wr:
            cur = i.text
        if hasattr(i, 'm0') and i.m0 != cur:
            probs.append(f"m0 mismatch at {i.tag}: have '{cur}' want '{i.m0}'")
    return probs

def build():
    nw = OPT['waves']
    pro, trn, fin = prologue(), transition(), finale()
    A = [[body_a(k, w) for k in range(7)] for w in range(nw)]
    B = [[body_b(k, w) for k in range(7)] for w in range(nw)]
    da, db = dispatch('A'), dispatch('B')
    traces = [Seg(pro + da + sum(A[w], []) + trn + db + sum(B[w], []) + fin) for w in range(nw)]
    res = {}
    mn = lambda x, y: y if x is None else (x if y is None else min(x, y))
    for tr in traces:
        for k, (a, b) in resolve_waits(tr).items():
            pa, pb = res.get(k, (None, None))
            res[k] = (mn(pa, a), mn(pb, b))
    probs = []
    for w, tr in enumerate(traces):
        apply_waits(tr, res)
        for X in (A[w], B[w]):
            for k in range(1, 7):
                assert [i.text for i in X[k]] == [i.text for i in X[0]], "loop body not periodic"
        probs += check(tr, "trace") + check_ring(tr) + check_m0(tr)
    slow, slow_tr = slow_path()
    probs += check(Seg(traces[0][:-1] + slow_tr), "slow")
    probs = [p for p in probs if 'global_load_dword' not in p.split('->')[-1]]
    for p in sorted(set(probs))[:40]:
        print(p, file=sys.stderr)
    if probs:
        print(len(probs), "problems", file=sys.stderr)
    print("est cycles: pro", est_cycles(pro), "A", [est_cycles(A[w][0]) for w in range(nw)], "trn", est_cycles(trn),
          "B", [est_cycles(B[w][0]) for w in range(nw)], "fin", est_cycles(fin), "total", est_cycles(traces[0]), file=sys.stderr)
    text = Seg(pro + da)
    for name, X, cont, nxt in (('A', A, 'L_trans', trn + db), ('B', B, 'L_final', fin)):
        for w in range(nw):
            if w or OPT['al']:
                text.e(".p2align 6")
            for _ in range(max(0, OPT['al'] - 1)):
                text.e("s_nop 0")
            text.e(f"L_{name}{w}:"); text.extend(X[w][0])
            if w < nw - 1:
                text.e(f"s_branch {cont}")
        text.e(f"{cont}:"); text.extend(nxt)
    k = [i.text for i in text].index("L_stubs:")
    text[k:k + 1] = stubs()
    hdr = open("standalone__mha_softmax__near_ridge.s.ref").read().split("; Override launch")[0]
    out = hdr + "; @launch grid=(256,1,1) block=(256,1,1) lds=163840\n"
    out += f'.amdgcn_target "amdgcn-amd-amdhsa--gfx950"\n.text\n.globl {KN}\n.p2align 8\n.type {KN},@function\n{KN}:\n'
    for i in text:
        out += ("" if i.kind == 'pseudo' else "    ") + i.text + "\n"
    out += ".p2align 7\n" + "L_code_end:\n"
    for i in slow:
        out += ("" if i.kind == 'pseudo' else "    ") + i.text + "\n"
    out += f'''.section .rodata,"a"
.p2align 6
.amdhsa_kernel {KN}
  .amdhsa_next_free_vgpr 512
  .amdhsa_next_free_sgpr 96
  .amdhsa_accum_offset 256
  .amdhsa_group_segment_fixed_size 0
  .amdhsa_kernarg_size 48
  .amdhsa_user_sgpr_count 2
  .amdhsa_user_sgpr_kernarg_segment_ptr 1
  .amdhsa_system_sgpr_workgroup_id_x 1
.end_amdhsa_kernel
'''
    return out

if __name__ == "__main__":
    path = sys.argv[1]
    for a in sys.argv[2:]:
        k, v = a.split("=")
        assert k in OPT, k
        OPT[k] = int(v)
    open(path, "w").write(build())
```

```python
import sys, struct, math
from asmlib import Ins, check, resolve_waits, apply_waits, check_ring

KN = "standalone__mha_softmax__near_ridge_kernel"
NT = 5
OPT = dict(nochk=0, nosync=0, al=0, cnt=0, wsel=1, qw=32, pollgap=7, force=0, nobar=0, nodma=0, noex=0, nord=0, rot=0, noqb=0, nopf=0, stamps=0, early=0, probe=-1, pa=0, pb=0, kvpol=0, qpol=1, opol=4, olast=4, oapol=4, waves=1, beta=4)
POL = ['', ' nt', ' sc1', ' sc1 nt', ' sc0 sc1', ' sc0 sc1 nt', ' sc0', ' sc0 nt']

def O(t, db): return 32 * t + 4 * db
S0, P0, NM0, VKA, VVA = 160, 176, 192, 212, 216
VDK, VDV, VIDX, VQG, VSL, VOS, VQR, VLN = 224, 225, 226, 227, 228, 229, 230, 231
VX, VT = 232, 240
VLW, VLR, VOW, VTR, VFA, VF, VLT, VPD, VPF, VST = 244, 245, 246, 247, 248, 249, 250, 251, 252, 253
def S(n): return S0 + 8 * (n & 1)
def P(n): return P0 + 4 * (n & 3)
def NM(t): return NM0 + 4 * t
def AQ(t, ks): return 16 * t + 4 * ks
def AK(par, j, ks): return 80 + 32 * par + 16 * j + 4 * ks
def AV(par, db): return 144 + 32 * par + 4 * db
def APAT(a, b): return (228 if a == b else 208) + 4 * a
def AL(p): return 248 + 4 * p
SK, SV, SQ, SO = 12, 16, 20, 24
sOff, sWL, sCnt, sCh, sC, sFlag, sW, sHalf, sHead, sMask, sStage = 28, 29, 30, 31, 32, 34, 35, 36, 37, 38, 39
sT = 40
sTmp = 46
sStamp = 56
sPC = 58
sThr = 76
sLin, sRot, sScr, sExp, sQM, sQE = 66, 67, 68, 69, 74, 75
VBASE = 32768
STAGE, STW = 65536, 21504
FLAGS = STAGE + 4 * STW
LSCR = FLAGS + 256
STAMPS = 0x26000
HEADQ, HEADK = 624 * 256, 1024 * 256
THR = 2.0 ** 60
LAST = 319

def vr(b, n=4): return f"v[{b}:{b+n-1}]"
def ar(b, n=4): return f"a[{b}:{b+n-1}]"
def sr(b, n=4): return f"s[{b}:{b+n-1}]"
def f32(x): return "0x%08x" % struct.unpack("<I", struct.pack("<f", x))[0]

def I(text, **kw):
    i = Ins(text)
    for k, v in kw.items():
        setattr(i, k, v)
    return i

def W(key, vm=None, ds=None):
    return I("s_waitcnt vmcnt(0)", key=key, need_vm=vm, need_ds=ds)

class Seg(list):
    def e(self, *lines):
        for l in lines:
            if isinstance(l, Ins):
                self.append(l)
            elif isinstance(l, int):
                self.append(Ins("s_nop 1"))
            elif l:
                self.append(Ins(l))

def cost(i):
    if i.kind == 'trans' or i.op.startswith('v_permlane'):
        return 8
    if i.kind == 'vmem':
        return 20 if 'store' in i.op else (16 if i.op == 'buffer_load_dwordx4' and 'lds' not in i.mods else 8)
    if i.kind == 'ds':
        return {'ds_write_b128': 20, 'ds_write2_b64': 20, 'ds_write_b64': 12, 'ds_write_b32': 8, 'ds_inc_u32': 8}.get(i.op, 4)
    if i.kind == 'nop':
        return 4 * i.n
    return 4

class Gap:
    def __init__(self, mf):
        self.mf = mf if isinstance(mf, Ins) else Ins(mf)
        self.sc, self.mem, self.val, self.post = [], [], [], []
        self.block = 0
    def nsc(self):
        return sum(i.kind != 'pseudo' for i in self.sc)
    def parts(self):
        return self.block + 4 * max(0, self.nsc() - 1) + sum(map(cost, self.mem)), sum(map(cost, self.val))
    def total(self, a, b):
        return (max(a, 4) if (b and 'smfmac' in self.mf.op) else a) + b
    def used(self):
        return self.total(*self.parts())
    def put(self, i):
        i = i if isinstance(i, Ins) else Ins(i)
        (self.val if i.kind in ('valu', 'trans') else self.mem if i.kind in ('ds', 'vmem') else self.sc).append(i)
    def out(self):
        return [self.mf] + self.sc + self.mem + self.val + self.post

def rank(i):
    return 2 if i.kind in ('valu', 'trans') else 1 if i.kind in ('ds', 'vmem') else 0

def fill(gaps, ops, late=False):
    seq, dist = [], 0
    for o in ops:
        if isinstance(o, int):
            dist += o
        else:
            seq.append((o if isinstance(o, Ins) else Ins(o), dist)); dist = 0
    n, m = len(seq), len(gaps)
    glue = lambda o: o.op in ('s_addc_u32', 's_cselect_b32')
    INF = 10 ** 9
    best = [[None] * (m + 1) for _ in range(n + 1)]
    def go(i, g):
        if i == n:
            return 0, None
        if g >= m:
            return INF, None
        if best[i][g] is not None:
            return best[i][g]
        base, nsc = gaps[g].used(), gaps[g].nsc()
        cands = [(go(i, g + 1)[0], 0)]
        (ua, ub), last = gaps[g].parts(), -1
        for k in range(i, n):
            o, d = seq[k]
            r = rank(o)
            if k > i and (d or r < last):
                break
            if r == 0:
                ua += 4 if nsc else 0
                nsc += 1
            elif r == 1:
                ua += cost(o)
            else:
                ub += cost(o)
            u = gaps[g].total(ua, ub)
            last = r
            if k + 1 < n and glue(seq[k + 1][0]):
                continue
            step = max(1, seq[k + 1][1]) if k + 1 < n else 1
            over = max(0, u - 8) - max(0, base - 8)
            cands.append((over + go(k + 1, g + step)[0], k + 1 - i))
        c = min(cands, key=lambda x: (x[0], x[1] if late else -x[1]))
        best[i][g] = c
        return c
    sys.setrecursionlimit(100000)
    g = seq[0][1] if n else 0
    total = go(0, g)[0]
    assert total < INF, "cannot fill"
    i = 0
    while i < n:
        k = go(i, g)[1]
        for o, _ in seq[i:i + k]:
            gaps[g].put(o)
        i += k
        g += max(1, seq[i][1]) if (k and i < n) else 1
    return total

def flat(gaps):
    s = Seg()
    for g in gaps:
        s.extend(g.out())
    return s

def stamp(s, level=1):
    if OPT['stamps'] >= level:
        s.e(f"s_memrealtime s[{sTmp+4}:{sTmp+5}]", f"s_memtime s[{sTmp+6}:{sTmp+7}]", "s_waitcnt lgkmcnt(0)",
            f"v_mov_b32 v{VST+1}, s{sTmp+4}",
            f"v_mov_b32 v{VST+2}, s{sTmp+6}" if not OPT['cnt'] else f"v_lshrrev_b32 v{VST+2}, 16, v{VIDX}",
            f"ds_write_b64 v{VST}, {vr(VST+1, 2)}", f"v_add_u32 v{VST}, 8, v{VST}", "s_waitcnt lgkmcnt(0)")

def item(i):
    if i >= 310:
        return (i - 310) // 2, 62 + (i & 1)
    return i % 5, i // 5

def k_reads(gb):
    par, slot = gb & 1, gb & 3
    return [I(f"ds_read_b128 {ar(AK(par, j, ks))}, v{VKA+ks} offset:{slot*8192 + j*4096}", tag=('K', gb), use=('K', gb, slot))
            for j in range(2) for ks in range(4)]

def v_reads(gb):
    par, slot = gb & 1, gb & 3
    return [I(f"ds_read_b64_tr_b16 {ar(AV(par, db) + 2*u, 2)}, v{VVA+db} offset:{VBASE + slot*8192 + u*4096}",
              tag=('V', gb), use=('V', gb, slot)) for db in range(8) for u in range(2)]

def dma(gb, part):
    i, isv, slot = part >> 1, part & 1, gb & 3
    m0 = I(f"s_add_u32 m0, s{sWL}, {isv*VBASE + slot*8192 + i*4096}")
    ld = I(f"buffer_load_dwordx4 v{VDV if isv else VDK}, {sr(SV if isv else SK)}, s{sOff} offen{POL[OPT['kvpol']]} lds",
           tag=('D', gb), fill=('V' if isv else 'K', gb, slot, 2), m0=m0.text)
    adv = [I(f"s_add_u32 s{sOff}, s{sOff}, 4096")] if isv else []
    if OPT['rot'] and part == 3:
        adv = [I(f"s_add_u32 s{sLin}, s{sLin}, 8192"), I(f"s_add_u32 s{sOff}, s{sLin}, s{sRot}"),
               I(f"s_and_b32 s{sOff}, s{sOff}, {HEADK-1}"), I(f"s_andn2_b32 s{sTmp+3}, s{sLin}, {HEADK-1}"),
               I(f"s_or_b32 s{sOff}, s{sOff}, s{sTmp+3}")]
    return m0, ld, adv

def qk(n):
    t, gb = item(n)
    return [f"v_mfma_f32_16x16x32_bf16 {vr(S(n)+4*j)}, {ar(AK(gb & 1, j, ks))}, {ar(AQ(t, ks))}, "
            f"{vr(NM(t)) if ks == 0 else vr(S(n)+4*j)}" for j in range(2) for ks in range(4)]

def pv(n):
    t, gb = item(n)
    return [f"v_mfma_f32_16x16x32_bf16 {vr(O(t, db))}, {vr(P(n))}, {ar(AV(gb & 1, db))}, {'0' if gb % 32 == 0 else vr(O(t, db))}"
            for db in range(8)]

def smf(n):
    a, b = item(n - 2)[0], item(n - 1)[0]
    assert a == b or b == (a + 1) % 5
    return f"v_smfmac_f32_16x16x64_bf16 {ar(AL((n - 2) // 160))}, {ar(APAT(a, b))}, {vr(P(n - 2), 8)}, v{VIDX}"

class St:
    def __init__(self, n):
        self.n = n
        a = qk(n + 1) if n + 1 <= LAST else []
        c = pv(n - 1) if n >= 1 else []
        ex = [f"v_exp_f32 v{S(n)+k}, v{S(n)+k}" for k in range(8)] if 0 <= n <= LAST else []
        cv = [f"v_cvt_pk_bf16_f32 v{P(n)+k}, v{S(n)+2*k}, v{S(n)+2*k+1}" for k in range(4)] if ex else []
        L = self.L = [Gap(m) for m in a + c]
        self.G = list(L)
        if len(L) == 16:
            for k in range(8):
                L[2 * k].put(ex[k])
            for k in range(4):
                L[4 * k + 3].put(cv[k])
            if n >= 2 and n % 2 == 0:
                self.G.insert(8, Gap(smf(n)))
        elif n == -1:
            L[7].post.append(Ins("s_nop 3"))
        elif n in (0, LAST):
            for g in range(8):
                if g >= 2 and g % 2 == 0:
                    L[g].put(cv[g // 2 - 1])
                L[g].put(ex[g])
            L[7].post += [Ins("s_nop 0"), Ins(cv[3]), Ins("s_nop 1")]
        else:
            self.G.insert(0, Gap(smf(n)))
    def frm(self, g):
        return self.G[self.G.index(self.L[g]):]
    def upto(self, g):
        return self.G[:self.G.index(self.L[g])]

VG = [5, 13]
STUBS = {}

def sync_check(st, key):
    name = "_".join(map(str, key))
    STUBS[name] = 1
    st.L[0].sc += [I(f"s_cbranch_vccnz L_wait_{name}", sync='check'), Ins(f"L_go_{name}:")]

def window(st, key, w=0, check=True):
    n, L = st.n, st.L
    gb, wi, vg = (n - 1) // 5, (n - 1) % 5, VG[w]
    other = 18 - vg
    if wi < 4:
        rd = (k_reads(gb + 1) + v_reads(gb + 1))[6 * wi:6 * wi + 6]
        sm = [g for g in st.G if g not in L]
        if wi < 3:
            slots = [L[1]] * (2 - len(sm)) + [L[3], L[7]] + sm + [L[11], L[15]]
        else:
            slots = [L[1], L[1], L[3], L[7]] + sm + [L[9], L[9]]
        for g, r in zip(slots, rd):
            g.put(r)
        m0, ld, adv = dma(gb + 4, wi)
        L[vg - 4].put(m0); L[vg].put(ld)
        if len(adv) == 1:
            L[vg + 1].put(adv[0])
        if wi == 0 and check:
            sync_check(st, key)
    else:
        if OPT['rot']:
            for k, a in enumerate(dma(gb + 4, 3)[2]):
                L[(2, 3, 4, 7, 8)[k]].put(a)
        L[0].put(W(key + ('sig',), vm={('D', gb + 2)}, ds={('K', gb + 1), ('V', gb + 1)}))
        L[1].put(I(f"ds_inc_u32 v{VFA}, v{VFA}", sync='signal'))
        pg = OPT['pollgap']
        cg = 13 if vg != 13 else 11
        L[pg].put(I(f"ds_read_b32 v{VF}, v{VFA}", tag=('F', gb), sync='poll'))
        L[6].put(f"s_add_u32 s{sExp}, s{sExp}, 4")
        L[cg].put(W(key + ('poll',), ds={('F', gb)}))
        L[cg].put(I(f"v_cmp_gt_u32 vcc, s{sExp}, v{VF}", sync='cmp'))
        L[15].block = 4
        L[vg].block = 8
    if wi == 2:
        L[15].put(W(key + ('k',), ds={('K', gb + 1)}))
    return st

def stubs():
    s = Seg()
    names = list(STUBS)
    s.e("s_branch L_hop0")
    for h in range(0, len(names), 2):
        s.e(".p2align 6", f"L_hop{h}:", f"s_branch L_hop{h+2}")
        for name in names[h:h + 2]:
            s.e(f"L_wait_{name}:", f"ds_read_b32 v{VF}, v{VFA}", "s_waitcnt lgkmcnt(0)",
                f"v_cmp_gt_u32 vcc, s{sExp}, v{VF}", "s_nop 4" if not OPT['cnt'] else f"v_add_u32 v{VIDX}, s77, v{VIDX}",
                f"s_cbranch_vccnz L_wait_{name}", f"s_branch L_go_{name}")
    s.e(f"L_hop{(len(names) + 1) // 2 * 2}:")
    return s

def scale_ops(x, t, packed):
    r = []
    if packed:
        for k in range(4):
            r += [f"v_lshlrev_b32 v{t+2*k}, 16, v{x+k}", f"v_and_b32 v{t+2*k+1}, s{sMask}, v{x+k}"]
        r += [f"v_pk_mul_f32 {vr(t+2*k, 2)}, {vr(t+2*k, 2)}, {sr(sC, 2)}" for k in range(4)]
        r += [f"v_cvt_pk_bf16_f32 v{x+k}, v{t+2*k}, v{t+2*k+1}" for k in range(4)]
        return r
    for h in range(2):
        for k in range(2):
            r += [f"v_lshlrev_b32 v{t+2*k}, 16, v{x+2*h+k}", f"v_and_b32 v{t+2*k+1}, s{sMask}, v{x+2*h+k}"]
        r += [f"v_mul_f32 v{t+k}, s{sC}, v{t+k}" for k in range(4)]
        r += [f"v_cvt_pk_bf16_f32 v{x+2*h+k}, v{t+2*k}, v{t+2*k+1}" for k in range(2)]
    return r

QM0 = f"s_mov_b32 m0, s{sQM}"
QADV = [f"s_add_u32 s{sCh}, s{sCh}, 1024", f"s_add_u32 s{sQM}, s{sQM}, 1024", f"s_min_u32 s{sQM}, s{sQM}, s{sQE}"]
def qb_load(i):
    return I(f"buffer_load_dwordx4 v{VQG}, {sr(SQ)}, s{sCh} offen{POL[OPT['qpol']]} lds", tag=('QB', i), m0=QM0)

def q_frag_reads(t, adr):
    return [I(f"ds_read_b128 {ar(AQ(t, ks))}, v{adr[ks]} offset:{4096*t}", tag=('Q', t)) for ks in range(4)]

def srd_rows(srd, ptr, p):
    a, b, c = sTmp, sTmp + 1, sTmp + 2
    return [f"s_xor_b32 s{b}, s{sHalf}, {p}", f"s_mul_i32 s{b}, s{b}, {320*256}",
            f"s_mul_i32 s{c}, s{sW}, {80*256}", f"s_add_u32 s{b}, s{b}, s{c}",
            f"s_add_u32 s{a}, s{sHead}, {p}", f"s_mul_i32 s{a}, s{a}, {HEADQ}", f"s_add_u32 s{a}, s{a}, s{b}",
            f"s_add_u32 s{srd}, s{ptr}, s{a}", f"s_addc_u32 s{srd+1}, s{ptr+1}, 0",
            f"s_sub_u32 s{b}, {HEADQ}, s{b}", f"s_min_u32 s{srd+2}, s{b}, {80*256}", f"s_mov_b32 s{srd+3}, 0x20000"]

def mref_mfma(t):
    return [f"v_mfma_f32_16x16x32_bf16 {vr(NM(t))}, {ar(AK(0, 0, ks))}, {ar(AQ(t, ks))}, {'0' if ks == 0 else vr(NM(t))}"
            for ks in range(4)]

def mref_valu(t):
    n = NM(t)
    r = [f"v_max3_f32 v{n}, v{n}, v{n+1}, v{n+2}", f"v_max_f32 v{n}, v{n}, v{n+3}"]
    for sw in ("v_permlane16_swap_b32", "v_permlane32_swap_b32"):
        r += [f"v_mov_b32 v{n+1}, v{n}", 2, f"{sw} v{n}, v{n+1}", f"v_max_f32 v{n}, v{n}, v{n+1}"]
    return r + [f"v_sub_f32 v{n+k}, {float(-OPT['beta'])}, v{n}" for k in (3, 2, 1, 0)]

def RL(t): return VX + 4 * (t & 1)

def l_ops(p, t, key):
    x, y = (VQG if t == 3 else VLT), VT + 3
    a = AL(p) + 2 * (t & 1)
    return [f"v_accvgpr_read_b32 v{x}, a{a}", f"v_accvgpr_read_b32 v{y}, a{a+1}", f"v_add_f32 v{x}, v{x}, v{y}",
            f"v_rcp_f32 v{y}, v{x}", f"ds_write_b32 v{VLW}, v{y}",
            I(f"ds_read_b128 {vr(RL(t))}, v{VLR} offset:{64*(t >> 1)}", tag=key + ('RL', t))]

def flag_ops(bit):
    return [f"v_add_f32 v{VLT}, v{VLT}, v{VQG}", f"v_cmp_ngt_f32 s[{sTmp}:{sTmp+1}], s{sThr}, v{VLT}", 2,
            f"s_cmp_lg_u64 s[{sTmp}:{sTmp+1}], 0", f"s_cselect_b32 s{sTmp}, {bit}, 0", f"s_or_b32 s{sFlag}, s{sFlag}, s{sTmp}"]

def pk_burst(t):
    return [Ins(f"v_pk_mul_f32 {vr(O(t, db)+2*k, 2)}, {vr(O(t, db)+2*k, 2)}, {vr(RL(t)+2*k, 2)}")
            for db in range(8) for k in range(2)]

def cvt_write(t):
    r = []
    for u in range(4):
        for db in (2 * u, 2 * u + 1):
            b = O(t, db)
            r += [f"v_cvt_pk_bf16_f32 v{b+k}, v{b+2*k}, v{b+2*k+1}" for k in range(2)]
        r.append(f"ds_write2_b64 v{VOW}, {vr(O(t, 2*u), 2)}, {vr(O(t, 2*u+1), 2)} offset0:{32*u} offset1:{32*u+16}")
    return r + [f"v_add_u32 v{VOW}, 4096, v{VOW}"]

def prologue():
    s = Seg()
    T = 72
    if OPT['early']:
        s.e("s_memrealtime s[64:65]")
    s.e("s_load_dwordx4 s[4:7], s[0:1], 0", "s_load_dwordx4 s[8:11], s[0:1], 16")
    if OPT['stamps']:
        s.e(f"s_load_dwordx2 s[{sStamp}:{sStamp+1}], s[0:1], 40")
    s.e("s_cmp_ge_u32 s2, 256", "s_cbranch_scc1 L_end")
    Wv, L, Q16, G, R, X, Y = T, VLN, T + 2, T + 3, T + 4, T + 5, T + 6
    s.e(f"v_lshrrev_b32 v{Wv}, 6, v0", f"v_and_b32 v{L}, 63, v0", f"v_lshlrev_b32 v{VPF}, 7, v0",
        f"v_readfirstlane_b32 s{sW}, v{Wv}", f"s_getpc_b64 s[{sPC}:{sPC+1}]", "L_pc:",
        f"v_min_u32 v{VPD}, L_trans-L_pc, v{VPF}",
        I(f"global_load_dword v{VPD}, v{VPD}, s[{sPC}:{sPC+1}]", tag='pf'))
    s.e(f"s_and_b32 s{sHead}, s2, 7", f"s_lshl_b32 s{sHead}, s{sHead}, 5",
        f"s_lshr_b32 s3, s2, 3", f"s_and_b32 s{sHalf}, s3, 1", f"s_and_b32 s3, s3, 30",
        f"s_add_u32 s{sHead}, s{sHead}, s3", f"s_lshl_b32 s{sWL}, s{sW}, 10")
    s.e(f"v_and_b32 v{Q16}, 15, v{L}", f"v_lshrrev_b32 v{G}, 4, v{L}",
        f"v_lshlrev_b32 v{X}, 2, v{G}", f"v_xor_b32 v{X}, v{Q16}, v{X}", f"v_lshlrev_b32 v{X}, 4, v{X}",
        f"v_lshl_add_u32 v{VQG}, v{G}, 8, v{X}",
        f"v_lshl_add_u32 v{R}, v{Wv}, 2, v{G}",
        f"v_xor_b32 v{X}, v{Q16}, v{R}", f"v_lshlrev_b32 v{X}, 4, v{X}", f"v_lshl_add_u32 v{VDK}, v{R}, 8, v{X}",
        f"v_and_b32 v{X}, 7, v{R}", f"v_lshlrev_b32 v{X}, 1, v{X}", f"v_xor_b32 v{X}, v{Q16}, v{X}",
        f"v_lshlrev_b32 v{X}, 4, v{X}", f"v_lshl_add_u32 v{VDV}, v{R}, 8, v{X}")
    s.e(f"s_mul_i32 s3, s{sHead}, {HEADK}", f"s_mov_b32 s{SK+2}, {2*HEADK}", f"s_mov_b32 s{SK+3}, 0x20000",
        f"s_mov_b32 s{SV+2}, {2*HEADK}", f"s_mov_b32 s{SV+3}, 0x20000", f"s_mov_b32 s{sOff}, 0")
    if OPT['rot']:
        s.e(f"s_lshr_b32 s{sRot}, s{sHead}, 1", f"s_mul_i32 s{sRot}, s{sRot}, {OPT['rot']}", f"s_and_b32 s{sRot}, s{sRot}, 31",
            f"s_lshl_b32 s{sRot}, s{sRot}, 13", f"s_mov_b32 s{sOff}, s{sRot}", f"s_mov_b32 s{sLin}, 0")
    for t in range(NT):
        s.e(f"s_mov_b32 s{sT+t}, {4096*t}")
    rows = srd_rows(SQ, 4, 0)
    s.e(*rows[:7], *rows[9:])
    if OPT['stamps']:
        s.e(f"v_lshlrev_b32 v{VST}, 8, v{Wv}", f"v_add_u32 v{VST}, {STAMPS}, v{VST}")
    if OPT['probe'] == 4 and OPT['pa'] == 0:
        s.e("s_memrealtime s[78:79]")
    s.e("s_waitcnt lgkmcnt(0)", *rows[7:9])
    if OPT['probe'] == 4 and OPT['pa'] == 1:
        s.e("s_memrealtime s[78:79]")
    def blk(gb):
        for p in range(4):
            m0, ld, adv = dma(gb, p)
            s.e(m0, "s_nop 0", ld, *adv)
    def qload(t):
        for c in range(4):
            s.e(I(f"buffer_load_dwordx4 {vr(80 + 16*t + 4*c)}, v{VQG}, {sr(SQ)}, s{sT+t} offen offset:{1024*c}{POL[OPT['qpol']]}",
                  tag=('QA', t)))
    adr = [VQR, VT, VT + 1, VT + 2]
    VSW = VX
    def qwait(t):
        s.e(W(('pro', 'q', t), vm={('QA', t)}))
    def qprep(t):
        for c in range(4):
            s.e(*scale_ops(80 + 16 * t + 4 * c, 64, True))
        for c in range(4):
            s.e(f"ds_write_b128 v{VSW}, {vr(80 + 16*t + 4*c)} offset:{4096*t + 1024*c}")
        s.e(*q_frag_reads(t, adr))
    def mref(t):
        s.e(W(('pro', 'm', t), ds={('Q', t), ('K', 0)}), *mref_mfma(t), "s_nop 7", *mref_valu(t), "s_nop 1")
    qload(0)
    s.e(f"s_add_u32 s{SK}, s6, s3", f"s_addc_u32 s{SK+1}, s7, 0", f"s_add_u32 s{SV}, s8, s3", f"s_addc_u32 s{SV+1}, s9, 0")
    blk(0); qload(1)
    stamp(s)
    s.e(f"v_add_u32 v{VPF}, L_trans-L_pc, v{VPF}", f"v_min_u32 v{VPF}, L_final-L_pc, v{VPF}")
    s.e(f"s_mov_b32 s{sFlag}, {OPT['force']}", f"s_mov_b32 s{sMask}, 0xffff0000",
        f"s_mov_b32 s{sC}, {f32(math.log2(math.e) / math.sqrt(128.0))}", f"s_mov_b32 s{sC+1}, s{sC}",
        f"s_mul_i32 s{sStage}, s{sW}, {STW}", f"s_add_u32 s{sStage}, s{sStage}, {STAGE}")
    for ks in range(4):
        s.e(f"v_add_u32 v{X}, {4*ks}, v{G}", f"v_xor_b32 v{X}, v{X}, v{Q16}", f"v_lshlrev_b32 v{X}, 4, v{X}",
            f"v_lshl_add_u32 v{VKA+ks}, v{Q16}, 8, v{X}")
    s.e(f"v_lshrrev_b32 v{X}, 2, v{L}", f"v_and_b32 v{Y}, 3, v{L}",
        f"v_lshlrev_b32 v{R}, 4, v{X}", f"v_lshl_add_u32 v{VOS}, v{Y}, 8, v{R}",
        f"v_lshlrev_b32 v{R}, 4, v{G}", f"v_lshl_add_u32 v{R}, v{Q16}, 8, v{R}", f"v_lshl_add_u32 v{R}, v{Y}, 6, v{R}",
        f"v_add_u32 v{VQR}, s{sStage}, v{R}", f"v_lshl_add_u32 v{VSW}, v{L}, 4, s{sStage}",
        f"v_lshl_add_u32 v{VSL}, v{L}, {2 if OPT['qw'] == 32 else 3}, s{sStage}",
        f"v_lshl_add_u32 v{VTR}, v{G}, 8, s{sStage}", f"v_lshl_add_u32 v{VTR}, v{Y}, 6, v{VTR}",
        f"v_bfe_u32 v{R}, v{L}, 2, 2", f"v_lshl_add_u32 v{VTR}, v{R}, 3, v{VTR}",
        f"v_lshl_add_u32 v{VOW}, v{Q16}, 3, s{sStage}", f"v_lshl_add_u32 v{VOW}, v{G}, 10, v{VOW}",
        f"s_lshl_b32 s{sScr}, s{sW}, 8", f"s_add_u32 s{sScr}, s{sScr}, {LSCR}",
        f"v_lshl_add_u32 v{VLW}, v{L}, 2, s{sScr}", f"v_lshl_add_u32 v{VLR}, v{G}, 4, s{sScr}",
        f"v_lshlrev_b32 v{VFA}, 2, v{L}", f"v_add_u32 v{VFA}, {FLAGS}, v{VFA}", f"v_mov_b32 v{VF}, 0",
        f"ds_write_b32 v{VFA}, v{VF}", f"s_mov_b32 s{sExp}, 0", "s_mov_b32 s77, 0x10000" if OPT['cnt'] else "", f"s_mov_b32 s{sThr}, {f32(THR)}",
        f"v_lshlrev_b32 v{Y}, 3, v{Y}", f"v_lshl_add_u32 v{Y}, v{X}, 8, v{Y}", f"v_and_b32 v{X}, 7, v{X}")
    for db in range(8):
        s.e(f"v_xor_b32 v{R}, {db}, v{X}", f"v_lshl_add_u32 v{VVA+db}, v{R}, 5, v{Y}")
    s.e(f"v_and_b32 v{X}, 1, v{L}", f"v_mul_u32_u24 v{X}, 0xaaaa, v{X}", f"v_add_u32 v{VIDX}, 0x4444, v{X}",
        f"v_lshrrev_b32 v{X}, 1, v{Q16}", f"v_lshrrev_b32 v{Y}, 5, v{L}", f"v_sub_u32 v{Y}, v{X}, v{Y}",
        f"v_cmp_gt_i32 vcc, 0, v{Y}", f"v_mov_b32 v{R}, 0x3f803f80", f"v_cmp_eq_u32 s[{sTmp}:{sTmp+1}], 5, v{X}",
        f"v_cndmask_b32 v{Y}, v{Y}, 4, vcc", "s_nop 0", f"v_cndmask_b32 v{Y}, v{Y}, 7, s[{sTmp}:{sTmp+1}]")
    for a in range(NT):
        s.e(f"v_cmp_eq_u32 vcc, {a}, v{Y}", f"v_cmp_eq_u32 s[{sTmp}:{sTmp+1}], {a}, v{X}", "s_nop 0",
            f"v_cndmask_b32 v{T+7}, 0, v{R}, vcc", f"v_cndmask_b32 v{T+1}, 0, v{R}, s[{sTmp}:{sTmp+1}]")
        for r in range(4):
            s.e(f"v_accvgpr_write_b32 a{APAT(a, -1)+r}, v{T+7}", f"v_accvgpr_write_b32 a{APAT(a, a)+r}, v{T+1}")
    for k in range(8):
        s.e(f"v_accvgpr_write_b32 a{AL(0)+k}, 0")
    for ks in range(1, 4):
        s.e(f"v_xor_b32 v{adr[ks]}, {64*ks}, v{VQR}")
    s.e("L_stubs:")
    qwait(0); stamp(s); qload(2); qprep(0)
    s.e(W(('pro', 'b0'), vm={('D', 0)}), "s_barrier", *k_reads(0))
    qload(3)
    s.e(*v_reads(0))
    mref(0)
    s.extend(flat(St(-1).G))
    qwait(1); qload(4); qprep(1); mref(1)
    s.extend(flat(St(0).G))
    qwait(2); blk(1); qprep(2); mref(2)
    s.extend(flat(St(1).G))
    qwait(3); blk(2); qprep(3); mref(3)
    s.extend(flat(St(2).G))
    qwait(4); blk(3); qprep(4); mref(4)
    stamp(s)
    s.e(W(('pro', 'b1'), vm={('D', 1)}), "s_barrier")
    st = {n: St(n) for n in range(3, 16)}
    fill(st[3].upto(11), k_reads(1))
    st[3].L[15].put(W(('pro', 'k1'), ds={('K', 1)}))
    d = [dma(4, p) for p in range(4)]
    for p, (n, g) in enumerate(((3, 13), (4, 5), (4, 13), (5, 5))):
        st[n].L[g - 3].put(d[p][0]); st[n].L[g].put(d[p][1])
        for k, a in enumerate(d[p][2]):
            st[n].L[g + 1 + k].put(a)
    st[5].L[14].put(W(('pro', 'b2'), vm={('D', 2)}, ds={('V', 1)}))
    st[5].L[15].put("s_barrier"); st[5].L[15].block = 4
    fill(st[3].frm(11) + st[4].G + st[5].upto(10), v_reads(1))
    for n in range(6, 16):
        window(st[n], ('peel', n), check=(n > 6))
    fill(st[6].G + st[7].G, srd_rows(SQ, 4, 1) + [
        f"s_mov_b32 s{sCh}, {0x100000 if OPT['noqb'] else 0}", f"s_mov_b32 s{sCnt}, 7",
        f"s_mov_b32 s{sQM}, s{sStage}", f"s_add_u32 s{sQE}, s{sStage}, 20480"])
    for i, n in enumerate((8, 11, 13)):
        st[n].L[9].put(QM0); st[n].L[13].put(qb_load(i))
        if i < 2:
            fill(st[n + 1].frm(7), QADV)
    for n in range(3, 16):
        s.extend(flat(st[n].G))
    return s

def dispatch(name):
    s = Seg()
    if OPT['waves'] == 2:
        s.e(f"s_bitcmp1_b32 s{sW}, {OPT['wsel']}", f"s_cbranch_scc1 L_{name}1")
        return s
    for w in range(1, OPT['waves']):
        s.e(f"s_cmp_eq_u32 s{sW}, {w}", f"s_cbranch_scc1 L_{name}{w}")
    return s

def body(name, n0, w, extras):
    st = [window(St(n0 + k), (name, w, k), w) for k in range(20)]
    vg = VG[w]
    tot = 0
    if not OPT['nopf']:
        st[4].L[vg].block = 0
        st[4].L[vg].put(I(f"global_load_dword v{VPD}, v{VPD}, s[{sPC}:{sPC+1}]", tag='pf'))
        tot += fill(st[2].G + st[3].G, [f"s_cmp_eq_u32 s{sCnt}, 1", f"s_cselect_b32 s{sScr}, -1, 0", 1,
                                        f"v_and_b32 v{VPD}, s{sScr}, v{VPF}"])
    st[19].L[10].put(f"s_sub_u32 s{sCnt}, s{sCnt}, 1")
    st[19].L[12].put(f"s_cmp_lg_u32 s{sCnt}, 0")
    ops = []
    for c in range(3):
        o, slot, m0, adv = extras(c)
        if OPT['noex']:
            continue
        g = st[9 + 5 * c].L
        g[vg].block = 0
        g[vg].put(slot)
        if m0:
            g[vg - 4].put(m0)
        tot += fill(st[7 + 5 * c].G, adv)
        if name == 'A':
            ops += o
        else:
            tot += fill(st[5 + 5 * c].G + st[6 + 5 * c].G + st[7 + 5 * c].G, o)
    tot += fill(sum((x.G for x in st), []), ops) if ops else 0
    s = Seg()
    stamp(s, 2)
    s.extend(flat(sum((x.G for x in st), [])))
    drop = lambda i: ((OPT['nodma'] and hasattr(i, 'fill')) or (OPT['nord'] and hasattr(i, 'use')) or
                      (OPT['nochk'] and getattr(i, 'sync', '') == 'check') or
                      (OPT['nosync'] and getattr(i, 'sync', '') in ('check', 'poll', 'cmp')))
    s = Seg(i for i in s if not drop(i))
    s.e(f"s_cbranch_scc1 L_{name}{w}")
    return s

def body_a(trip, w):
    def extras(c):
        i = 3 * trip + c
        x = VX + 4 * (c & 1)
        sc = scale_ops(x, VT, False)
        if OPT['qw'] == 32:
            rd = [f"ds_read2st64_b32 {vr(x+2*h, 2)}, v{VSL} offset0:{4*c+2*h} offset1:{4*c+2*h+1}" for h in range(2)]
            wr = [[f"ds_write_b32 v{VSL}, v{x+2*h+k} offset:{1024*c + 256*(2*h+k)}" for k in range(2)] for h in range(2)]
        else:
            rd = [f"ds_read_b64 {vr(x+2*h, 2)}, v{VSL} offset:{1024*c + 512*h}" for h in range(2)]
            wr = [[f"ds_write_b64 v{VSL}, {vr(x+2*h, 2)} offset:{1024*c + 512*h}"] for h in range(2)]
        ops = [W(('A', w, 'q', c), vm={('QB', i)})] + [I(r, tag=('QR', i)) for r in rd]
        ops += [6, W(('A', w, 'r', c), ds={('QR', i)})] + sc[:10] + wr[0] + sc[10:] + wr[1]
        ops += [f"v_add_u32 v{VSL}, 3072, v{VSL}"] if c == 2 else []
        return ops, qb_load(i + 3), QM0, QADV
    return body('A', 16 + 20 * trip, w, extras)

def body_b(trip, w):
    def extras(c):
        i = 3 * trip + c
        ops = [I(f"ds_read_b64_tr_b16 {vr(VX+2*h, 2)}, v{VTR} offset:{1024*c + 32*h}", tag=('OA', i)) for h in range(2)]
        ops += [12, W(('B', w, 'o', c), ds={('OA', i)})]
        ops += [f"v_add_u32 v{VTR}, 3072, v{VTR}"] if c == 2 else []
        st = I(f"buffer_store_dwordx4 {vr(VX)}, v{VOS}, {sr(SO)}, s{sCh} offen{POL[OPT['oapol']]}")
        return ops, st, None, QADV[:1]
    return body('B', 166 + 20 * trip, w, extras)

def transition():
    s = Seg()
    stamp(s)
    st = {n: window(St(n), ('tr', n)) for n in range(156, 166)}
    adr = [VQR, VT, VT + 1, VT + 2]
    st[160].L[VG[0]].block = st[165].L[VG[0]].block = 0
    fill(st[156].G, [f"v_xor_b32 v{adr[ks]}, {64*ks}, v{VQR}" for ks in range(1, 4)] +
         q_frag_reads(0, adr) + q_frag_reads(1, adr))
    for t in range(2, 5):
        fill(st[155 + t].upto(10), q_frag_reads(t, adr))
    for t in range(NT):
        x = st[157 + t]
        x.L[13].put(W(('tr', 'mq', t), ds={('Q', t), ('K', 32)}))
        k = x.G.index(x.L[14])
        x.G[k:k] = [Gap(m) for m in mref_mfma(t)]
    for t in range(NT):
        fill(st[158 + t].L[2:15], mref_valu(t))
    lstep = [157, 159, 160, 161, 162]
    for t in range(NT):
        fill(st[lstep[t]].G[:-8], l_ops(0, t, ('tr',)))
    pstep = [157, 159, 160, 162, 163]
    for t in range(NT):
        g = st[pstep[t]].G[-2]
        g.sc.append(W(('tr', 'rl', t), ds={('tr', 'RL', t)}))
        g.block -= 8
        g.post += pk_burst(t)
    win = [st[158].G + st[159].G, st[160].G + st[161].upto(6), st[161].frm(6) + st[162].G,
           st[163].G + st[164].upto(4), st[164].frm(4) + st[165].upto(6)]
    for t in range(NT):
        fill(win[t], cvt_write(t))
    fill(st[163].G + st[164].G, srd_rows(SO, 10, 0) + [f"s_mov_b32 s{sCh}, -1024", f"s_mov_b32 s{sCnt}, 7"])
    fill(st[165].frm(6)[:-3], flag_ops(1))
    fill(st[165].frm(6), [f"v_lshlrev_b32 v{VPF}, 7, v{VLN}", f"v_add_u32 v{VPF}, L_final-L_pc, v{VPF}",
                          f"v_min_u32 v{VPF}, L_code_end-L_pc-4, v{VPF}"])
    for n in range(156, 166):
        s.extend(flat(st[n].G))
    stamp(s)
    return s

def finale():
    s = Seg()
    stamp(s)
    st = {n: St(n) for n in range(306, 321)}
    sync_check(st[306], ('fin',))
    fill(st[306].frm(1) + st[307].G + st[308].upto(6), k_reads(62) + v_reads(62))
    st[308].L[6].put(W(('fin', 'b'), vm={('D', 63)}))
    st[308].L[7].put("s_barrier"); st[308].L[7].block = 4
    st[308].L[15].put(W(('fin', 'k62'), ds={('K', 62)}))
    fill(st[308].frm(8) + st[309].upto(10), k_reads(63))
    st[309].L[15].put(W(('fin', 'k63'), ds={('K', 63)}))
    v63 = v_reads(63)
    for g, k in ((9, 2), (11, 1), (13, 2), (15, 1)):
        for _ in range(k):
            st[310].L[g].put(v63.pop(0))
    fill(st[311].G, v63)
    st[312].L[6].put(W(('fin', 'v63'), ds={('V', 63)}))
    fill(st[309].frm(10) + st[310].upto(8), [f"v_add_u32 v{VOW}, {-5*4096}, v{VOW}", f"v_add_u32 v{VTR}, {-7*3072}, v{VTR}"])
    fill(st[306].frm(1) + st[307].G, srd_rows(SO, 10, 1))
    st[318].L[15].post.append(Ins("s_nop 1"))
    def readback(t):
        return [I(f"ds_read_b64_tr_b16 {vr(O(t, c)+2*h, 2)}, v{VTR} offset:{4096*t + 1024*c + 32*h}", tag=('OB', t, c))
                for c in range(4) for h in range(2)]
    def stores(t, gapn):
        r = []
        for c in range(4):
            pol = POL[OPT['olast'] if t == 4 else OPT['opol']]
            r += [W(('fin', 'o', t, c), ds={('OB', t, c)}),
                  f"buffer_store_dwordx4 {vr(O(t, c))}, v{VOS}, {sr(SO)}, s{sT+t} offen offset:{1024*c}{pol}"]
            if gapn:
                r.append(gapn)
        return r
    for t in range(4):
        n = 312 + 2 * t
        nxt = st[n + 1]
        cut = 8 if t < 3 else 5
        fill(st[n].frm(14) + nxt.G[:cut - 3], l_ops(1, t, ('fin',)))
        g = nxt.G[cut]
        g.sc.append(W(('fin', 'rl', t), ds={('fin', 'RL', t)}))
        g.block -= 8
        g.post += pk_burst(t)
        if t < 3:
            fill(nxt.G[cut + 1:] + st[n + 2].upto(13), cvt_write(t) + readback(t))
            fill(st[n + 2].frm(13) + st[n + 3].G, [2] + stores(t, 2))
        else:
            fill(nxt.G[cut + 1:] + st[320].G[:5], cvt_write(t) + readback(t))
    fill(st[320].G[5:], l_ops(1, 4, ('fin',)))
    for n in range(306, 321):
        s.extend(flat(st[n].G))
    stamp(s)
    s.e(*stores(3, 0), W(('fin', 'rl', 4), ds={('fin', 'RL', 4)}), *pk_burst(4), *cvt_write(4)[:-1], *readback(4),
        *flag_ops(2), *stores(4, 0))
    stamp(s)
    if OPT['stamps']:
        s.e("s_waitcnt vmcnt(0)")
        stamp(s)
        s.e(f"v_lshlrev_b32 v0, 2, v{VLN}",
            f"s_lshl_b32 s3, s{sW}, 8", "v_add_u32 v0, s3, v0", f"v_add_u32 v1, {STAMPS}, v0",
            "ds_read_b32 v2, v1", "s_lshl_b32 s3, s2, 10", "v_add_u32 v0, s3, v0", "s_waitcnt lgkmcnt(0)",
            f"global_store_dword v0, v2, s[{sStamp}:{sStamp+1}]")
    if OPT['probe'] >= 0:
        a, b = OPT['pa'], OPT['pb']
        s.e(f"v_mov_b32 v4, s{sW}", "v_lshlrev_b32 v0, 8, v4", f"v_add_u32 v0, {STAMPS}, v0",
            "ds_read_b64 v[2:3], v0", f"ds_read_b64 v[4:5], v0 offset:{8*a}", f"ds_read_b64 v[6:7], v0 offset:{8*b}",
            "s_waitcnt lgkmcnt(0)", "v_sub_u32 v6, v6, v4", "v_sub_u32 v7, v7, v5")
        if OPT['probe'] == 3:
            s.e("v_subrev_u32 v6, s64, v4", "v_lshlrev_b32 v6, 4, v6")
        elif OPT['probe'] == 4:
            s.e("s_sub_u32 s78, s78, s64", "s_lshl_b32 s78, s78, 4", "v_mov_b32 v6, s78")
        else:
            s.e(["v_mov_b32 v6, 5000", "v_lshlrev_b32 v6, 2, v6", "v_lshrrev_b32 v6, 3, v7"][OPT['probe']])
        s.e("v_add_u32 v6, 10000, v6", "s_nop 1", "v_readfirstlane_b32 s60, v6", "v_readfirstlane_b32 s61, v2", "s_nop 3",
            "s_mov_b32 s61, s64" if OPT['early'] else "s_nop 0",
            "L_spin:", "s_memrealtime s[62:63]", "s_waitcnt lgkmcnt(0)", "s_sub_u32 s62, s62, s61",
            "s_cmp_lt_u32 s62, s60", "s_cbranch_scc1 L_spin")
    s.e(f"s_cmp_lg_u32 s{sFlag}, 0", "s_cbranch_scc1 L_slow", "L_end:", "s_endpgm")
    return s

def slow_path():
    QF, KF, VF, SS, PP, NN, OO = 0, 16, 48, 80, 88, 92, 96
    AG, AL_, AT, AO, MX, LS, T = 128, 129, 130, 131, 132, 133, 136
    sP, sTile, sKo, sEnd = 70, 71, 72, 73
    head, tile, mx, mid, blk, out = Seg(), Seg(), Seg(), Seg(), Seg(), Seg()
    head.e("L_slow:", "s_waitcnt vmcnt(0) lgkmcnt(0)",
           f"v_and_b32 v{T}, 15, v{VLN}", f"v_lshrrev_b32 v{T+1}, 4, v{VLN}",
           f"v_lshlrev_b32 v{AG}, 4, v{T+1}", f"v_lshl_add_u32 v{AG}, v{T}, 8, v{AG}",
           f"v_lshlrev_b32 v{AO}, 3, v{T+1}", f"v_lshl_add_u32 v{AO}, v{T}, 8, v{AO}",
           f"v_lshlrev_b32 v{AL_}, 4, v{VLN}",
           f"v_lshrrev_b32 v{T}, 2, v{VLN}", f"v_and_b32 v{T+1}, 3, v{VLN}",
           f"v_lshl_add_u32 v{AT}, v{T}, 8, s{sStage}", f"v_lshl_add_u32 v{AT}, v{T+1}, 3, v{AT}",
           f"s_mov_b32 s{sP}, 0",
           "L_slow_pass:", f"s_lshr_b32 s{sTmp}, s{sFlag}, s{sP}", f"s_bitcmp1_b32 s{sTmp}, 0", "s_cbranch_scc0 L_slow_next",
           *srd_rows(SQ, 4, f"s{sP}"), *srd_rows(SO, 10, f"s{sP}"), f"s_mov_b32 s{sTile}, 0")
    tile.e("L_slow_tile:")
    tile.e(*[f"buffer_load_dwordx4 {vr(QF+4*ks)}, v{AG}, {sr(SQ)}, s{sTile} offen offset:{64*ks}" for ks in range(4)],
           f"s_mul_i32 s{sKo}, s{sP}, {HEADK}", f"s_add_u32 s{sEnd}, s{sKo}, {HEADK}",
           f"v_mov_b32 v{MX}, 0xff800000", "s_waitcnt vmcnt(0)")
    for ks in range(4):
        tile.e(*scale_ops(QF + 4 * ks, T, True))
    def chain(d, k, c):
        return [f"v_mfma_f32_16x16x32_bf16 {vr(d)}, {vr(k+4*ks)}, {vr(QF+4*ks)}, {c if ks == 0 else vr(d)}" for ks in range(4)]
    def across(op, r):
        x = []
        for sw in ("v_permlane16_swap_b32", "v_permlane32_swap_b32"):
            x += [f"v_mov_b32 v{T}, v{r}", "s_nop 1", f"{sw} v{r}, v{T}", f"{op} v{r}, v{r}, v{T}"]
        return x
    mx.e("L_slow_max:")
    mx.e(*[f"buffer_load_dwordx4 {vr(KF+4*ks)}, v{AG}, {sr(SK)}, s{sKo} offen offset:{64*ks}" for ks in range(4)],
         f"s_add_u32 s{sKo}, s{sKo}, 4096", "s_waitcnt vmcnt(0)", *chain(SS, KF, "0"), "s_nop 7",
         f"v_max3_f32 v{MX}, v{MX}, v{SS}, v{SS+1}", f"v_max3_f32 v{MX}, v{MX}, v{SS+2}, v{SS+3}",
         f"s_cmp_lt_u32 s{sKo}, s{sEnd}", "s_cbranch_scc1 L_slow_max")
    mid.e(*across("v_max_f32", MX), *[f"v_sub_f32 v{NN+k}, 0, v{MX}" for k in range(4)],
          *[f"v_mov_b32 v{OO+k}, 0" for k in range(32)], f"v_mov_b32 v{LS}, 0", f"s_mul_i32 s{sKo}, s{sP}, {HEADK}")
    blk.e("L_slow_blk:")
    for j in range(2):
        blk.e(f"s_add_u32 m0, s{sStage}, {4096*j}",
              *[f"buffer_load_dwordx4 {vr(KF+16*j+4*ks)}, v{AG}, {sr(SK)}, s{sKo} offen offset:{64*ks}" for ks in range(4)],
              *[f"buffer_load_dwordx4 v{AL_}, {sr(SV)}, s{sKo} offen offset:{1024*i} lds" for i in range(4)],
              f"s_add_u32 s{sKo}, s{sKo}, 4096")
    blk.e("s_waitcnt vmcnt(0)")
    blk.e(*[f"ds_read_b64_tr_b16 {vr(VF+4*db+2*u, 2)}, v{AT} offset:{4096*u + 32*db}" for db in range(8) for u in range(2)])
    blk.e(*chain(SS, KF, vr(NN)), *chain(SS + 4, KF + 16, vr(NN)), "s_nop 7",
          *[f"v_exp_f32 v{SS+k}, v{SS+k}" for k in range(8)], "s_nop 0",
          *[f"v_add_f32 v{LS}, v{LS}, v{SS+k}" for k in range(8)],
          *[f"v_cvt_pk_bf16_f32 v{PP+k}, v{SS+2*k}, v{SS+2*k+1}" for k in range(4)],
          "s_waitcnt lgkmcnt(0)", "s_nop 0",
          *[f"v_mfma_f32_16x16x32_bf16 {vr(OO+4*db)}, {vr(VF+4*db)}, {vr(PP)}, {vr(OO+4*db)}" for db in range(8)],
          f"s_cmp_lt_u32 s{sKo}, s{sEnd}", "s_cbranch_scc1 L_slow_blk")
    out.e(*across("v_add_f32", LS), f"v_rcp_f32 v{LS}, v{LS}", "s_nop 0",
          *[f"v_mul_f32 v{OO+k}, v{OO+k}, v{LS}" for k in range(32)])
    for db in range(8):
        b = OO + 4 * db
        out.e(f"v_cvt_pk_bf16_f32 v{b}, v{b}, v{b+1}", f"v_cvt_pk_bf16_f32 v{b+1}, v{b+2}, v{b+3}",
              f"buffer_store_dwordx2 {vr(b, 2)}, v{AO}, {sr(SO)}, s{sTile} offen offset:{32*db}")
    out.e(f"s_add_u32 s{sTile}, s{sTile}, 4096", f"s_cmp_lt_u32 s{sTile}, {4096*NT}", "s_cbranch_scc1 L_slow_tile")
    end = Seg()
    end.e("L_slow_next:", f"s_add_u32 s{sP}, s{sP}, 1", f"s_cmp_lt_u32 s{sP}, 2", "s_cbranch_scc1 L_slow_pass", "s_endpgm")
    once = tile + mx + mx + mid + blk + blk + out
    return Seg(head + tile + mx + mid + blk + out + end), Seg(head + once + once + end)

def est_cycles(seq):
    tot, cur, nsc, inm = 0, 0, 0, False
    for i in seq:
        if i.kind == 'pseudo':
            continue
        if i.kind == 'mfma':
            tot += max(16, cur) if inm else cur
            cur, nsc, inm, sm = 8, 0, True, 'smfmac' in i.op
        elif rank(i) == 0:
            nsc += 1
            cur += cost(i) - (4 if (inm and nsc == 1 and cur == 8) else 0)
        else:
            if i.op.startswith('v_pk') and inm:
                cur = max(cur, 24)
            if inm and sm and rank(i) == 2:
                cur = max(cur, 12)
            cur += cost(i)
    return tot + (max(16, cur) if inm else cur)

def check_m0(trace):
    cur, probs = None, []
    for i in trace:
        if 'm0' in i.wr:
            cur = i.text
        if hasattr(i, 'm0') and i.m0 != cur:
            probs.append(f"m0 mismatch at {i.tag}: have '{cur}' want '{i.m0}'")
    return probs

def build():
    nw = OPT['waves']
    pro, trn, fin = prologue(), transition(), finale()
    A = [[body_a(k, w) for k in range(7)] for w in range(nw)]
    B = [[body_b(k, w) for k in range(7)] for w in range(nw)]
    da, db = dispatch('A'), dispatch('B')
    traces = [Seg(pro + da + sum(A[w], []) + trn + db + sum(B[w], []) + fin) for w in range(nw)]
    res = {}
    mn = lambda x, y: y if x is None else (x if y is None else min(x, y))
    for tr in traces:
        for k, (a, b) in resolve_waits(tr).items():
            pa, pb = res.get(k, (None, None))
            res[k] = (mn(pa, a), mn(pb, b))
    probs = []
    for w, tr in enumerate(traces):
        apply_waits(tr, res)
        for X in (A[w], B[w]):
            for k in range(1, 7):
                assert [i.text for i in X[k]] == [i.text for i in X[0]], "loop body not periodic"
        probs += check(tr, "trace") + check_ring(tr) + check_m0(tr)
    slow, slow_tr = slow_path()
    probs += check(Seg(traces[0][:-1] + slow_tr), "slow")
    probs = [p for p in probs if 'global_load_dword' not in p.split('->')[-1]]
    for p in sorted(set(probs))[:40]:
        print(p, file=sys.stderr)
    if probs:
        print(len(probs), "problems", file=sys.stderr)
    print("est cycles: pro", est_cycles(pro), "A", [est_cycles(A[w][0]) for w in range(nw)], "trn", est_cycles(trn),
          "B", [est_cycles(B[w][0]) for w in range(nw)], "fin", est_cycles(fin), "total", est_cycles(traces[0]), file=sys.stderr)
    text = Seg(pro + da)
    for name, X, cont, nxt in (('A', A, 'L_trans', trn + db), ('B', B, 'L_final', fin)):
        for w in range(nw):
            if w or OPT['al']:
                text.e(".p2align 6")
            for _ in range(max(0, OPT['al'] - 1)):
                text.e("s_nop 0")
            text.e(f"L_{name}{w}:"); text.extend(X[w][0])
            if w < nw - 1:
                text.e(f"s_branch {cont}")
        text.e(f"{cont}:"); text.extend(nxt)
    k = [i.text for i in text].index("L_stubs:")
    text[k:k + 1] = stubs()
    hdr = open("standalone__mha_softmax__near_ridge.s.ref").read().split("; Override launch")[0]
    out = hdr + "; @launch grid=(256,1,1) block=(256,1,1) lds=163840\n"
    out += f'.amdgcn_target "amdgcn-amd-amdhsa--gfx950"\n.text\n.globl {KN}\n.p2align 8\n.type {KN},@function\n{KN}:\n'
    for i in text:
        out += ("" if i.kind == 'pseudo' else "    ") + i.text + "\n"
    out += ".p2align 7\n" + "L_code_end:\n"
    for i in slow:
        out += ("" if i.kind == 'pseudo' else "    ") + i.text + "\n"
    out += f'''.section .rodata,"a"
.p2align 6
.amdhsa_kernel {KN}
  .amdhsa_next_free_vgpr 512
  .amdhsa_next_free_sgpr 96
  .amdhsa_accum_offset 256
  .amdhsa_group_segment_fixed_size 0
  .amdhsa_kernarg_size 48
  .amdhsa_user_sgpr_count 2
  .amdhsa_user_sgpr_kernarg_segment_ptr 1
  .amdhsa_system_sgpr_workgroup_id_x 1
.end_amdhsa_kernel
'''
    return out

if __name__ == "__main__":
    path = sys.argv[1]
    for a in sys.argv[2:]:
        k, v = a.split("=")
        assert k in OPT, k
        OPT[k] = int(v)
    open(path, "w").write(build())
```

```python
import re

def regs_of(tok):
    tok = tok.strip()
    m = re.fullmatch(r'-?(?:abs\()?([vas])(\d+)\)?', tok)
    if m:
        return [m.group(1) + m.group(2)]
    m = re.fullmatch(r'-?([vas])\[(\d+):(\d+)\]', tok)
    if m:
        return [m.group(1) + str(i) for i in range(int(m.group(2)), int(m.group(3)) + 1)]
    if tok in ('vcc', 'm0', 'exec'):
        return [tok]
    return []

TRANS = ('v_exp_f32', 'v_log_f32', 'v_rcp_f32', 'v_rsq_f32', 'v_sqrt_f32')

class Ins:
    def __init__(self, text):
        self.text = text
        t = text.split(';')[0].strip()
        self.op = t.split()[0] if t else ''
        self.rd, self.wr = set(), set()
        self.srcc = []
        self.dst = []
        self.ab = set()
        self.kind = 'other'
        if not t or t.endswith(':') or t.startswith('.'):
            self.kind = 'pseudo'
            return
        rest = t[len(self.op):].strip()
        ops = [o.strip() for o in rest.split(',')] if rest else []
        if ops:
            last = ops[-1].split()
            ops[-1] = last[0] if last else ''
            self.mods = last[1:]
        else:
            self.mods = []
        R = [regs_of(o) for o in ops]
        op = self.op
        if op.startswith('v_mfma'):
            self.kind = 'mfma'
            self.dst = R[0]; self.wr = set(R[0]); self.ab = set(R[1] + R[2]); self.srcc = R[3]
            self.rd = self.ab | set(R[3])
        elif op.startswith('v_smfmac'):
            self.kind = 'mfma'
            self.dst = R[0]; self.wr = set(R[0]); self.ab = set(R[1] + R[2] + R[3]); self.srcc = R[0]
            self.rd = self.ab | set(R[0])
        elif op.startswith('v_permlane'):
            self.kind = 'valu'; self.wr = set(R[0] + R[1]); self.rd = set(R[0] + R[1])
        elif op.startswith('v_cmp'):
            self.kind = 'valu'; self.wr = set(R[0]); self.rd = set(sum(R[1:], []))
        elif op.startswith('v_'):
            self.kind = 'trans' if op.replace('_e32', '').replace('_e64', '') in TRANS else 'valu'
            self.wr = set(R[0]); self.rd = set(sum(R[1:], []))
            if op.startswith('v_fmac') or op.startswith('v_writelane'):
                self.rd |= set(R[0])
        elif op.startswith('ds_read'):
            self.kind = 'ds'; self.wr = set(R[0]); self.rd = set(R[1])
        elif op.startswith('ds_write') or op.startswith('ds_inc'):
            self.kind = 'ds'; self.rd = set(sum(R, []))
        elif op.startswith('ds_bpermute') or op.startswith('ds_swizzle'):
            self.kind = 'ds'; self.wr = set(R[0]); self.rd = set(sum(R[1:], []))
        elif op.startswith('buffer_load') or op.startswith('global_load'):
            self.kind = 'vmem'
            if 'lds' in self.mods or '_lds_' in op:
                self.rd = set(sum(R, [])) | {'m0'}
            else:
                self.wr = set(R[0]); self.rd = set(sum(R[1:], []))
        elif op.startswith('buffer_store') or op.startswith('global_store'):
            self.kind = 'vmem'; self.rd = set(sum(R, []))
            self.sdata = R[0] if op.startswith('buffer') else R[1]
        elif op == 's_waitcnt':
            self.kind = 'wait'
            m = re.search(r'vmcnt\((\d+)\)', t); self.vm = int(m.group(1)) if m else None
            m = re.search(r'lgkmcnt\((\d+)\)', t); self.lgkm = int(m.group(1)) if m else None
        elif op == 's_nop':
            self.kind = 'nop'; self.n = int(ops[0]) + 1
        elif op.startswith('s_load') or op in ('s_memtime', 's_memrealtime'):
            self.kind = 'smem'; self.wr = set(R[0]); self.rd = set(sum(R[1:], []))
        elif op.startswith('s_cmp') or op.startswith('s_bitcmp'):
            self.kind = 'salu'; self.rd = set(sum(R, []))
        elif op.startswith('s_cbranch') or op in ('s_branch', 's_barrier', 's_endpgm', 's_setprio'):
            self.kind = 'ctl'
        elif op.startswith('s_'):
            self.kind = 'salu'; self.wr = set(R[0]); self.rd = set(sum(R[1:], []))
            if op.startswith('s_addk') or op.startswith('s_bitset'):
                self.rd |= set(R[0])
        else:
            raise ValueError("unknown instruction " + text)

def check(trace, name=""):
    probs = []
    pos = 0
    lastw = {}
    lastc = {}
    laststore = {}
    ds_out, vm_out = [], []
    smem_out = []
    sccw = None
    for ins in trace:
        k = ins.kind
        if k == 'pseudo':
            continue
        if ins.op in ('s_addc_u32', 's_subb_u32'):
            d = int(next(iter(ins.wr))[1:])
            if sccw is None or sccw.wr != {f"s{d-1}"}:
                probs.append(f"{name}: carry for '{ins.text}' comes from '{sccw.text if sccw else None}'")
        if ins.op.startswith('s_cselect') or ins.op.startswith('s_cbranch_scc'):
            if sccw is None or not (sccw.op.startswith('s_cmp') or sccw.op.startswith('s_bitcmp')):
                probs.append(f"{name}: SCC for '{ins.text}' comes from '{sccw.text if sccw else None}'")
        if k == 'salu' and not any(ins.op.startswith(x) for x in ('s_mov', 's_mul', 's_cselect', 's_getpc', 's_getreg')):
            sccw = ins
        def need(r, n, why, tab=lastw):
            p = tab.get(r)
            if p is not None and pos - p[0] - 1 < n:
                probs.append(f"{name}: {why}: '{p[1].text}' -> '{ins.text}' has {pos - p[0] - 1} < {n}")
        touched = ins.rd | ins.wr
        for q, nm in ((ds_out, 'lgkm'), (vm_out, 'vm'), (smem_out, 'smem')):
            for o in q:
                if o.wr & touched:
                    probs.append(f"{name}: unwaited {nm} result: '{o.text}' -> '{ins.text}'")
        for r in ins.rd:
            p = lastw.get(r)
            if not p:
                continue
            w = p[1]
            if w.kind == 'mfma':
                big = 12 if ('smfmac' in w.op or '32x32' in w.op) else 8
                if k == 'mfma':
                    if r in ins.ab:
                        need(r, big, "mfma D -> mfma A/B")
                    elif ins.srcc != w.dst or ins.op != w.op:
                        need(r, big - 2, "mfma D -> mfma C overlap")
                elif k in ('valu', 'trans', 'ds', 'vmem'):
                    need(r, big, "mfma D -> read")
            elif w.kind in ('valu', 'trans'):
                if r[0] in 'va' and r != 'vcc':
                    if k == 'mfma':
                        need(r, 2, "valu -> mfma")
                    if ins.op.startswith('v_permlane') or 'dpp' in ins.op:
                        need(r, 2, "valu -> permlane/dpp")
                    if ins.op.startswith('v_readfirstlane') or ins.op.startswith('v_readlane'):
                        need(r, 1, "valu -> readlane")
                    if w.kind == 'trans' and k == 'valu':
                        need(r, 1, "trans -> valu")
                else:
                    if k == 'vmem':
                        need(r, 5, "valu sgpr -> vmem")
                    if k in ('valu', 'trans'):
                        need(r, 2, "valu sgpr -> valu")
                    if k == 'salu':
                        need(r, 1, "valu sgpr -> salu")
            elif w.kind == 'salu' and r == 'm0' and k == 'vmem':
                need(r, 1, "m0 -> lds dma")
        for r in ins.wr:
            p = lastw.get(r)
            if p and p[1].kind == 'mfma':
                big = 12 if ('smfmac' in p[1].op or '32x32' in p[1].op) else 8
                if k in ('valu', 'trans', 'ds', 'vmem'):
                    need(r, big, "mfma D -> WAW")
                elif k == 'mfma' and ins.srcc != p[1].dst:
                    need(r, big - 2, "mfma D -> mfma WAW")
            if k in ('valu', 'trans'):
                need(r, 7, "mfma C read -> valu WAR", lastc)
                need(r, 2, "store data WAR", laststore)
            elif k in ('ds', 'vmem', 'mfma'):
                need(r, 1, "store data WAR", laststore)
        if k == 'wait':
            if ins.vm is not None:
                while len(vm_out) > ins.vm:
                    vm_out.pop(0)
            if ins.lgkm is not None:
                if smem_out and ins.lgkm != 0:
                    probs.append(f"{name}: counted lgkmcnt with SMEM outstanding: {ins.text}")
                if ins.lgkm == 0:
                    smem_out = []
                while len(ds_out) > ins.lgkm:
                    ds_out.pop(0)
        if k == 'ds':
            ds_out.append(ins)
        if k == 'vmem':
            vm_out.append(ins)
            if len(vm_out) > 63:
                probs.append(f"{name}: more than 63 vmem outstanding at {ins.text}")
            if hasattr(ins, 'sdata'):
                for r in ins.sdata:
                    laststore[r] = (pos, ins)
        if k == 'smem':
            smem_out.append(ins)
        for r in ins.wr:
            lastw[r] = (pos, ins)
        if k == 'mfma':
            for r in ins.srcc:
                lastc[r] = (pos, ins)
        pos += ins.n if k == 'nop' else 1
    return probs


def resolve_waits(trace):
    res = {}
    vm, ds = [], []
    for ins in trace:
        if ins.kind == 'vmem':
            vm.append((getattr(ins, 'tag', None), None))
        elif ins.kind == 'ds':
            ds.append((getattr(ins, 'tag', None), getattr(ins, 'tag2', None)))
        elif ins.kind == 'wait' and hasattr(ins, 'key'):
            def cnt(q, tags, cap):
                if tags is None:
                    return None
                if tags == 'all':
                    return 0
                last = max((i for i, t in enumerate(q) if t[0] in tags or t[1] in tags), default=None)
                if last is None:
                    return None
                return min(cap, len(q) - 1 - last)
            a, b = cnt(vm, ins.need_vm, 63), cnt(ds, ins.need_ds, 15)
            pa, pb = res.get(ins.key, (None, None))
            mn = lambda x, y: y if x is None else (x if y is None else min(x, y))
            res[ins.key] = (mn(pa, a), mn(pb, b))
    return res

def apply_waits(seq, res):
    for ins in seq:
        if ins.kind == 'wait' and hasattr(ins, 'key'):
            a, b = res[ins.key]
            ins.vm, ins.lgkm = a, b
            parts = ([f"vmcnt({a})"] if a is not None else []) + ([f"lgkmcnt({b})"] if b is not None else [])
            ins.text = "s_waitcnt " + " ".join(parts) if parts else "s_nop 0"

def check_ring(trace):
    probs = []
    vm_out, ds_out = [], []
    landed, visible = set(), set()
    issued = {}
    pending_reads = {}
    reads_since_bar = set()
    holder = {}
    phase, pend_vis, pend_reads = 'check', set(), set()
    for ins in trace:
        if ins.kind == 'vmem':
            vm_out.append(ins)
            f = getattr(ins, 'fill', None)
            if f:
                slot = (f[0], f[2])
                old = holder.get(slot)
                if old is not None and old != f[1] and (f[0], old) in reads_since_bar:
                    probs.append(f"DMA {f} overwrites {old} with reads not fenced by a barrier")
                holder[slot] = f[1]
        elif ins.kind == 'ds':
            ds_out.append(ins)
            u = getattr(ins, 'use', None)
            if u:
                if (u[0], u[1]) not in visible:
                    probs.append(f"read of {u} before it is visible: {ins.text}")
                if holder.get((u[0], u[2])) != u[1]:
                    probs.append(f"read of {u} but slot holds {holder.get((u[0], u[2]))}")
                reads_since_bar.add((u[0], u[1]))
        elif ins.kind == 'wait':
            if ins.vm is not None:
                while len(vm_out) > ins.vm:
                    o = vm_out.pop(0)
                    f = getattr(o, 'fill', None)
                    if f:
                        issued[(f[0], f[1])] = issued.get((f[0], f[1]), 0) + 1
                        if issued[(f[0], f[1])] == f[3]:
                            landed.add((f[0], f[1]))
            if ins.lgkm is not None:
                while len(ds_out) > ins.lgkm:
                    ds_out.pop(0)
        if ins.op == 's_barrier':
            visible |= landed
            reads_since_bar = {(o.use[0], o.use[1]) for o in ds_out if hasattr(o, 'use')}
        sync = getattr(ins, 'sync', None)
        if sync:
            want = {'signal': 'check', 'poll': 'signal', 'cmp': 'poll', 'check': 'cmp'}[sync]
            if want != phase:
                probs.append(f"sync order: {sync} after {phase}")
            phase = sync
        if sync == 'signal':
            pend_vis = set(landed)
            pend_reads = {(o.use[0], o.use[1]) for o in ds_out if hasattr(o, 'use')}
        elif sync == 'check':
            visible |= pend_vis
            reads_since_bar = set(pend_reads)
        if ins.kind == 'ds' and hasattr(ins, 'use'):
            pend_reads.add((ins.use[0], ins.use[1]))
    return probs
```

```python
import sys, struct, math
from asmlib import Ins, check, resolve_waits, apply_waits, check_ring

KN = "standalone__mha_softmax__near_ridge_kernel"
NT = 5
OPT = dict(stamps=0, early=0, probe=-1, pa=0, pb=0, kvpol=0, qpol=1, opol=4, oapol=4, beta=4, force=0,
           qw=32, al=0, cnt=0, noex=0, nopf=0, st0=1)
POL = ['', ' nt', ' sc1', ' sc1 nt', ' sc0 sc1', ' sc0 sc1 nt', ' sc0', ' sc0 nt']

def O(t, db): return 32 * t + 4 * db
S0, P0, NM0, VKA, VVA = 160, 176, 192, 212, 216
VDK, VDV, VIDX, VQG, VSL, VOS, VQR, VLN = 224, 225, 226, 227, 228, 229, 230, 231
VX, VT = 232, 240
VLW, VLR, VOW, VTR, VFA, VF, VLT, VPD, VPF, VST = 244, 245, 246, 247, 248, 249, 250, 251, 252, 253
def S(n): return S0 + 8 * (n & 1)
def P(n): return P0 + 4 * (n & 3)
def NM(t): return NM0 + 4 * t
def AQ(t, ks): return 16 * t + 4 * ks
def AK(par, j, ks): return 80 + 32 * par + 16 * j + 4 * ks
def AV(par, db): return 144 + 32 * par + 4 * db
def APAT(t): return 208 + 4 * t
def AL(p): return 228 + 4 * p
SK, SV, SQ, SO = 12, 16, 20, 24
sOff, sWL, sCnt, sCh, sC, sFlag, sW, sHalf, sHead, sMask, sStage = 28, 29, 30, 31, 32, 34, 35, 36, 37, 38, 39
sT = 40
sTmp = 46
sStamp = 56
sPC = 58
sThr = 76
sOffV, sScr, sExp, sQM, sQE = 66, 68, 69, 74, 75
VBASE = 32768
STAGE, STW = 65536 + 1024, 21504
FLAGS = STAGE + 4 * STW
LSCR = FLAGS + 256
STAMPS = 0x26000
HEADQ, HEADK = 624 * 256, 1024 * 256
THR = 2.0 ** 60
LAST = 319

def vr(b, n=4): return f"v[{b}:{b+n-1}]"
def ar(b, n=4): return f"a[{b}:{b+n-1}]"
def sr(b, n=4): return f"s[{b}:{b+n-1}]"
def f32(x): return "0x%08x" % struct.unpack("<I", struct.pack("<f", x))[0]

def I(text, **kw):
    i = Ins(text)
    for k, v in kw.items():
        setattr(i, k, v)
    return i

def W(key, vm=None, ds=None):
    return I("s_waitcnt vmcnt(0)", key=key, need_vm=vm, need_ds=ds)

class Seg(list):
    def e(self, *lines):
        for l in lines:
            if isinstance(l, Ins):
                self.append(l)
            elif isinstance(l, int):
                self.append(Ins("s_nop 1"))
            elif l:
                self.append(Ins(l))

def cost(i):
    if i.kind == 'trans' or i.op.startswith('v_permlane'):
        return 8
    if i.kind == 'vmem':
        return 20 if 'store' in i.op else (16 if i.op == 'buffer_load_dwordx4' and 'lds' not in i.mods else 8)
    if i.kind == 'ds':
        return {'ds_write_b128': 20, 'ds_write2_b64': 20, 'ds_write_b64': 12, 'ds_write_b32': 8, 'ds_inc_u32': 8}.get(i.op, 4)
    if i.kind == 'nop':
        return 4 * i.n
    return 4

class Gap:
    def __init__(self, mf):
        self.mf = mf if isinstance(mf, Ins) else Ins(mf)
        self.sc, self.mem, self.val, self.post = [], [], [], []
        self.block = 0
    def nsc(self):
        return sum(i.kind != 'pseudo' for i in self.sc)
    def parts(self):
        return self.block + 4 * max(0, self.nsc() - 1) + sum(map(cost, self.mem)), sum(map(cost, self.val))
    def total(self, a, b):
        return (max(a, 4) if (b and 'smfmac' in self.mf.op) else a) + b
    def used(self):
        return self.total(*self.parts())
    def put(self, i):
        i = i if isinstance(i, Ins) else Ins(i)
        (self.val if i.kind in ('valu', 'trans') else self.mem if i.kind in ('ds', 'vmem') else self.sc).append(i)
    def out(self):
        return [self.mf] + self.sc + self.mem + self.val + self.post

def rank(i):
    return 2 if i.kind in ('valu', 'trans') else 1 if i.kind in ('ds', 'vmem') else 0

def fill(gaps, ops, late=False):
    seq, dist = [], 0
    for o in ops:
        if isinstance(o, int):
            dist += o
        else:
            seq.append((o if isinstance(o, Ins) else Ins(o), dist)); dist = 0
    n, m = len(seq), len(gaps)
    glue = lambda o: o.op in ('s_addc_u32', 's_cselect_b32')
    INF = 10 ** 9
    best = [[None] * (m + 1) for _ in range(n + 1)]
    def go(i, g):
        if i == n:
            return 0, None
        if g >= m:
            return INF, None
        if best[i][g] is not None:
            return best[i][g]
        base, nsc = gaps[g].used(), gaps[g].nsc()
        cands = [(go(i, g + 1)[0], 0)]
        (ua, ub), last = gaps[g].parts(), -1
        for k in range(i, n):
            o, d = seq[k]
            r = rank(o)
            if k > i and (d or r < last):
                break
            if r == 0:
                ua += 4 if nsc else 0
                nsc += 1
            elif r == 1:
                ua += cost(o)
            else:
                ub += cost(o)
            u = gaps[g].total(ua, ub)
            last = r
            if k + 1 < n and glue(seq[k + 1][0]):
                continue
            step = max(1, seq[k + 1][1]) if k + 1 < n else 1
            over = max(0, u - 8) - max(0, base - 8)
            cands.append((over + go(k + 1, g + step)[0], k + 1 - i))
        c = min(cands, key=lambda x: (x[0], x[1] if late else -x[1]))
        best[i][g] = c
        return c
    sys.setrecursionlimit(100000)
    g = seq[0][1] if n else 0
    total = go(0, g)[0]
    assert total < INF, "cannot fill"
    i = 0
    while i < n:
        k = go(i, g)[1]
        for o, _ in seq[i:i + k]:
            gaps[g].put(o)
        i += k
        g += max(1, seq[i][1]) if (k and i < n) else 1
    return total

def flat(gaps):
    s = Seg()
    for g in gaps:
        s.extend(g.out())
    return s

def stamp(s, level=1):
    if OPT['stamps'] >= level:
        s.e(f"s_memrealtime s[{sTmp+4}:{sTmp+5}]", f"s_memtime s[{sTmp+6}:{sTmp+7}]", "s_waitcnt lgkmcnt(0)",
            f"v_mov_b32 v{VST+1}, s{sTmp+4}",
            f"v_mov_b32 v{VST+2}, s{sTmp+6}" if not OPT['cnt'] else f"v_lshrrev_b32 v{VST+2}, 16, v{VIDX}",
            f"ds_write_b64 v{VST}, {vr(VST+1, 2)}", f"v_add_u32 v{VST}, 8, v{VST}", "s_waitcnt lgkmcnt(0)")

def item(i):
    return (i % 10) // 2, 2 * (i // 10) + (i & 1)

def k_reads(gb):
    par, slot = gb & 1, gb & 3
    return [I(f"ds_read_b128 {ar(AK(par, j, ks))}, v{VKA+ks} offset:{slot*8192 + j*4096}", tag=('K', gb), use=('K', gb, slot))
            for j in range(2) for ks in range(4)]

def v_reads(J, half):
    r = []
    for db in range(4 * half, 4 * half + 4):
        for h in range(2):
            gb = 2 * J + h
            r += [I(f"ds_read_b64_tr_b16 {ar(AV(h, db) + 2*u, 2)}, v{VVA+db} offset:{VBASE + (gb & 3)*8192 + u*4096}",
                    tag=('V', J, half, 2 * (db & 3) + h), use=('V', gb, gb & 3)) for u in range(2)]
    return r

def vtags(J, half, upto=8):
    return {('V', J, half, k) for k in range(upto)}

def dma(isv, J, part):
    gb = 2 * J + (part >> 1)
    so = sOffV if isv else sOff
    m0 = I(f"s_add_u32 m0, s{sWL}, {isv*VBASE + (J & 1)*16384 + part*4096}")
    ld = I(f"buffer_load_dwordx4 v{VDV if isv else VDK}, {sr(SV if isv else SK)}, s{so} offen{POL[OPT['kvpol']]} lds",
           tag=('DV' if isv else 'DK', J), fill=('V' if isv else 'K', gb, gb & 3, 2), m0=m0.text)
    return m0, ld, I(f"s_add_u32 s{so}, s{so}, 4096")

def qk(n):
    t, gb = item(n)
    return [f"v_mfma_f32_16x16x32_bf16 {vr(S(n)+4*j)}, {ar(AK(gb & 1, j, ks))}, {ar(AQ(t, ks))}, "
            f"{vr(NM(t)) if ks == 0 else vr(S(n)+4*j)}" for j in range(2) for ks in range(4)]

def pv(n):
    m = (n - 2) & ~1
    t, gb = item(m)
    return [f"v_mfma_f32_16x16x32_bf16 {vr(O(t, db))}, {vr(P(m + h))}, {ar(AV(h, db))}, "
            f"{'0' if (gb % 32 == 0 and h == 0) else vr(O(t, db))}"
            for db in range(4 * (n & 1), 4 * (n & 1) + 4) for h in range(2)]

def smf(n):
    return f"v_smfmac_f32_16x16x64_bf16 {ar(AL((n - 2) // 160))}, {ar(APAT(item(n - 2)[0]))}, {vr(P(n - 2), 8)}, v{VIDX}"

class St:
    def __init__(self, n, smpos=8):
        self.n = n
        a = qk(n + 1) if n + 1 <= LAST else []
        c = pv(n) if n >= 2 else []
        ex = [f"v_exp_f32 v{S(n)+k}, v{S(n)+k}" for k in range(8)] if 0 <= n <= LAST else []
        cv = [f"v_cvt_pk_bf16_f32 v{P(n)+k}, v{S(n)+2*k}, v{S(n)+2*k+1}" for k in range(4)] if ex else []
        L = self.L = [Gap(m) for m in a + c]
        self.G = list(L)
        self.SM = None
        if len(L) == 16:
            for k in range(8):
                L[2 * k].put(ex[k])
            for k in range(4):
                L[4 * k + 3].put(cv[k])
            if n % 2 == 0:
                self.SM = Gap(smf(n))
                self.G.insert(smpos, self.SM)
        elif n == -1:
            L[7].post.append(Ins("s_nop 3"))
        elif ex:
            for g in range(8):
                if g >= 2 and g % 2 == 0:
                    L[g].put(cv[g // 2 - 1])
                L[g].put(ex[g])
            L[7].post += [Ins("s_nop 0"), Ins(cv[3])] + ([Ins("s_nop 1")] if n == LAST else [])
        elif n % 2 == 0:
            self.SM = Gap(smf(n))
            self.G.insert(0, self.SM)
    def frm(self, g):
        return self.G[self.G.index(self.L[g]):]
    def upto(self, g):
        return self.G[:self.G.index(self.L[g])]

STUBS = {}

def put_dma(st, g, d):
    st.L[g - 3].put(d[0]); st.L[g].put(d[1]); st.L[g + 1].put(d[2])

def signal(st, g, key, vm, ds):
    st.L[g - 1].put(W(key + ('sig',), vm=vm, ds=ds))
    st.L[g].put(I(f"ds_inc_u32 v{VFA}, v{VFA}", sync='signal'))
    st.L[g + 2].put(f"s_add_u32 s{sExp}, s{sExp}, 4")

def poll(st, g):
    st.L[g].put(I(f"ds_read_b32 v{VF}, v{VFA}", tag=('F', st.n), sync='poll'))

def compare(st, g, key, pn):
    st.L[g].put(W(key + ('poll',), ds={('F', pn)}))
    st.L[g].put(I(f"v_cmp_gt_u32 vcc, s{sExp}, v{VF}", sync='cmp'))
    st.L[g + 2].block = 4

def leave(st, g, key):
    name = "_".join(map(str, key))
    STUBS[name] = 1
    st.L[g].sc += [I(f"s_cbranch_vccnz L_wait_{name}", sync='check'), Ins(f"L_go_{name}:")]

KSLOTS = [1, 3, 5, 5, 7, 9, 9, 11]
VSLOTS = {0: [9, 9, 11, 13, 13, 15], 1: [1, 1, 3, 5, 5, 7, 9, 9, 11, 13, 13, 15],
          2: [1, 1, 3, 5, 5, 7, 'S', 9, 9, 11, 13, 13, 15], 3: [1]}

def ring(st, key, refill=True, sync=True):
    n, L = st.n, st.L
    J, r = n // 10, n % 10
    if r in (7, 8):
        for g, x in zip(KSLOTS, k_reads(2 * J + 2 + r - 7)):
            L[g].put(x)
    if r in (8, 9):
        L[15].put(W(key + ('k',), ds={('K', 2 * J + 2 + r - 8)}))
    if r <= 3:
        first = sum(len(VSLOTS[k]) for k in range(r))
        for g, x in zip(VSLOTS[r], (v_reads(J, 0) + v_reads(J, 1))[first:]):
            (st.SM if g == 'S' else L[g]).put(x)
    if r == 2:
        L[7].put(W(key + ('v',), ds=vtags(J, 0)))
    if r == 3:
        L[7].put(W(key + ('v',), ds=vtags(J, 1, 7)))
        L[12].put(W(key + ('v2',), ds=vtags(J, 1)))
    if refill:
        spots = {3: [(0, 0, 5), (0, 1, 13)], 4: [(0, 2, 5), (0, 3, 13)], 6: [(1, 0, 5), (1, 1, 13)],
                 7: [(1, 2, 13)], 8: [(1, 3, 13)]}
        for isv, part, g in spots.get(r, []):
            put_dma(st, g, dma(isv, J + 2, part))
    if sync:
        if r == 5:
            signal(st, 1, key, {('DK', J + 1)}, vtags(J, 1)); poll(st, 7); compare(st, 13, key, n)
        if r == 6:
            leave(st, 0, key)
        if r == 9:
            signal(st, 5, key, {('DV', J + 1)}, {('K', 2 * J + 2), ('K', 2 * J + 3)}); poll(st, 11)
        if r == 0:
            compare(st, 3, key, n - 1); leave(st, 6, key)
    return st

def stubs():
    s = Seg()
    names = list(STUBS)
    s.e("s_branch L_hop0")
    for h in range(0, len(names), 2):
        s.e(".p2align 6", f"L_hop{h}:", f"s_branch L_hop{h+2}")
        for name in names[h:h + 2]:
            s.e(f"L_wait_{name}:", f"ds_read_b32 v{VF}, v{VFA}", "s_waitcnt lgkmcnt(0)",
                f"v_cmp_gt_u32 vcc, s{sExp}, v{VF}", "s_nop 4" if not OPT['cnt'] else f"v_add_u32 v{VIDX}, s77, v{VIDX}",
                f"s_cbranch_vccnz L_wait_{name}", f"s_branch L_go_{name}")
    s.e(f"L_hop{(len(names) + 1) // 2 * 2}:")
    return s

def scale_ops(x, t, packed):
    r = []
    if packed:
        for k in range(4):
            r += [f"v_lshlrev_b32 v{t+2*k}, 16, v{x+k}", f"v_and_b32 v{t+2*k+1}, s{sMask}, v{x+k}"]
        r += [f"v_pk_mul_f32 {vr(t+2*k, 2)}, {vr(t+2*k, 2)}, {sr(sC, 2)}" for k in range(4)]
        r += [f"v_cvt_pk_bf16_f32 v{x+k}, v{t+2*k}, v{t+2*k+1}" for k in range(4)]
        return r
    for h in range(2):
        for k in range(2):
            r += [f"v_lshlrev_b32 v{t+2*k}, 16, v{x+2*h+k}", f"v_and_b32 v{t+2*k+1}, s{sMask}, v{x+2*h+k}"]
        r += [f"v_mul_f32 v{t+k}, s{sC}, v{t+k}" for k in range(4)]
        r += [f"v_cvt_pk_bf16_f32 v{x+2*h+k}, v{t+2*k}, v{t+2*k+1}" for k in range(2)]
    return r

QM0 = f"s_mov_b32 m0, s{sQM}"
QADV = [f"s_add_u32 s{sCh}, s{sCh}, 1024", f"s_add_u32 s{sQM}, s{sQM}, 1024", f"s_min_u32 s{sQM}, s{sQM}, s{sQE}"]
def qb_load(i):
    return I(f"buffer_load_dwordx4 v{VQG}, {sr(SQ)}, s{sCh} offen{POL[OPT['qpol']]} lds", tag=('QB', i), m0=QM0)

def q_frag_reads(t, adr):
    return [I(f"ds_read_b128 {ar(AQ(t, ks))}, v{adr[ks]} offset:{4096*t}", tag=('Q', t)) for ks in range(4)]

def srd_rows(srd, ptr, p):
    a, b, c = sTmp, sTmp + 1, sTmp + 2
    return [f"s_xor_b32 s{b}, s{sHalf}, {p}", f"s_mul_i32 s{b}, s{b}, {320*256}",
            f"s_mul_i32 s{c}, s{sW}, {80*256}", f"s_add_u32 s{b}, s{b}, s{c}",
            f"s_add_u32 s{a}, s{sHead}, {p}", f"s_mul_i32 s{a}, s{a}, {HEADQ}", f"s_add_u32 s{a}, s{a}, s{b}",
            f"s_add_u32 s{srd}, s{ptr}, s{a}", f"s_addc_u32 s{srd+1}, s{ptr+1}, 0",
            f"s_sub_u32 s{b}, {HEADQ}, s{b}", f"s_min_u32 s{srd+2}, s{b}, {80*256}", f"s_mov_b32 s{srd+3}, 0x20000"]

def mref_mfma(t):
    return [f"v_mfma_f32_16x16x32_bf16 {vr(NM(t))}, {ar(AK(0, 0, ks))}, {ar(AQ(t, ks))}, {'0' if ks == 0 else vr(NM(t))}"
            for ks in range(4)]

def mref_valu(t):
    n = NM(t)
    r = [f"v_max3_f32 v{n}, v{n}, v{n+1}, v{n+2}", f"v_max_f32 v{n}, v{n}, v{n+3}"]
    for sw in ("v_permlane16_swap_b32", "v_permlane32_swap_b32"):
        r += [f"v_mov_b32 v{n+1}, v{n}", 2, f"{sw} v{n}, v{n+1}", f"v_max_f32 v{n}, v{n}, v{n+1}"]
    return r + [f"v_sub_f32 v{n+k}, {float(-OPT['beta'])}, v{n}" for k in (3, 2, 1, 0)]

def RL(t): return VX + 4 * (t & 1)

def l_ops(p, t, key):
    x, y = (VQG if t == 3 else VLT), VT + 3
    a = AL(p) + 2 * (t & 1)
    return [f"v_accvgpr_read_b32 v{x}, a{a}", f"v_accvgpr_read_b32 v{y}, a{a+1}", f"v_add_f32 v{x}, v{x}, v{y}",
            f"v_rcp_f32 v{y}, v{x}", f"ds_write_b32 v{VLW}, v{y}",
            I(f"ds_read_b128 {vr(RL(t))}, v{VLR} offset:{64*(t >> 1)}", tag=key + ('RL', t))]

def flag_ops(bit):
    return [f"v_add_f32 v{VLT}, v{VLT}, v{VQG}", f"v_cmp_ngt_f32 s[{sTmp}:{sTmp+1}], s{sThr}, v{VLT}", 2,
            f"s_cmp_lg_u64 s[{sTmp}:{sTmp+1}], 0", f"s_cselect_b32 s{sTmp}, {bit}, 0", f"s_or_b32 s{sFlag}, s{sFlag}, s{sTmp}"]

def pk_burst(t, dbs=range(8)):
    return [Ins(f"v_pk_mul_f32 {vr(O(t, db)+2*k, 2)}, {vr(O(t, db)+2*k, 2)}, {vr(RL(t)+2*k, 2)}")
            for db in dbs for k in range(2)]

def cvt_write(t, us=range(4)):
    r = []
    for u in us:
        for db in (2 * u, 2 * u + 1):
            b = O(t, db)
            r += [f"v_cvt_pk_bf16_f32 v{b+k}, v{b+2*k}, v{b+2*k+1}" for k in range(2)]
        r.append(f"ds_write2_b64 v{VOW}, {vr(O(t, 2*u), 2)}, {vr(O(t, 2*u+1), 2)} offset0:{32*u} offset1:{32*u+16}")
    return r + ([f"v_add_u32 v{VOW}, 4096, v{VOW}"] if 3 in us else [])

def burst(g, key, t, dbs=range(8)):
    if key:
        g.sc.append(W(key + ('rl', t), ds={key + ('RL', t)}))
    g.block -= 8
    g.post += pk_burst(t, dbs)

def prologue():
    s = Seg()
    T = 72
    if OPT['early']:
        s.e("s_memrealtime s[64:65]")
    s.e("s_load_dwordx4 s[4:7], s[0:1], 0", "s_load_dwordx4 s[8:11], s[0:1], 16")
    if OPT['stamps']:
        s.e(f"s_load_dwordx2 s[{sStamp}:{sStamp+1}], s[0:1], 40")
    s.e("s_cmp_ge_u32 s2, 256", "s_cbranch_scc1 L_end")
    Wv, L, Q16, G, R, X, Y = T, VLN, T + 2, T + 3, T + 4, T + 5, T + 6
    s.e(f"v_lshrrev_b32 v{Wv}, 6, v0", f"v_and_b32 v{L}, 63, v0", f"v_lshlrev_b32 v{VPF}, 7, v0",
        f"v_readfirstlane_b32 s{sW}, v{Wv}", f"s_getpc_b64 s[{sPC}:{sPC+1}]", "L_pc:",
        f"v_min_u32 v{VPD}, L_trans-L_pc, v{VPF}",
        I(f"global_load_dword v{VPD}, v{VPD}, s[{sPC}:{sPC+1}]", tag='pf'))
    s.e(f"s_and_b32 s{sHead}, s2, 7", f"s_lshl_b32 s{sHead}, s{sHead}, 5",
        f"s_lshr_b32 s3, s2, 3", f"s_and_b32 s{sHalf}, s3, 1", f"s_and_b32 s3, s3, 30",
        f"s_add_u32 s{sHead}, s{sHead}, s3", f"s_lshl_b32 s{sWL}, s{sW}, 10")
    s.e(f"v_and_b32 v{Q16}, 15, v{L}", f"v_lshrrev_b32 v{G}, 4, v{L}",
        f"v_lshlrev_b32 v{X}, 2, v{G}", f"v_xor_b32 v{X}, v{Q16}, v{X}", f"v_lshlrev_b32 v{X}, 4, v{X}",
        f"v_lshl_add_u32 v{VQG}, v{G}, 8, v{X}",
        f"v_lshl_add_u32 v{R}, v{Wv}, 2, v{G}",
        f"v_xor_b32 v{X}, v{Q16}, v{R}", f"v_lshlrev_b32 v{X}, 4, v{X}", f"v_lshl_add_u32 v{VDK}, v{R}, 8, v{X}",
        f"v_and_b32 v{X}, 7, v{R}", f"v_lshlrev_b32 v{X}, 1, v{X}", f"v_xor_b32 v{X}, v{Q16}, v{X}",
        f"v_lshlrev_b32 v{X}, 4, v{X}", f"v_lshl_add_u32 v{VDV}, v{R}, 8, v{X}")
    s.e(f"s_mul_i32 s3, s{sHead}, {HEADK}", f"s_mov_b32 s{SK+2}, {2*HEADK}", f"s_mov_b32 s{SK+3}, 0x20000",
        f"s_mov_b32 s{SV+2}, {2*HEADK}", f"s_mov_b32 s{SV+3}, 0x20000", f"s_mov_b32 s{sOff}, 0", f"s_mov_b32 s{sOffV}, 0")
    for t in range(NT):
        s.e(f"s_mov_b32 s{sT+t}, {4096*t}")
    rows = srd_rows(SQ, 4, 0)
    s.e(*rows[:7], *rows[9:])
    if OPT['stamps']:
        s.e(f"v_lshlrev_b32 v{VST}, 8, v{Wv}", f"v_add_u32 v{VST}, {STAMPS}, v{VST}")
    if OPT['probe'] == 4 and OPT['pa'] == 0:
        s.e("s_memrealtime s[78:79]")
    s.e("s_waitcnt lgkmcnt(0)", *rows[7:9])
    if OPT['probe'] == 4 and OPT['pa'] == 1:
        s.e("s_memrealtime s[78:79]")
    def blk(isv, J):
        for p in range(4):
            m0, ld, adv = dma(isv, J, p)
            s.e(m0, "s_nop 0", ld, adv)
    def qload(t):
        for c in range(4):
            s.e(I(f"buffer_load_dwordx4 {vr(80 + 16*t + 4*c)}, v{VQG}, {sr(SQ)}, s{sT+t} offen offset:{1024*c}{POL[OPT['qpol']]}",
                  tag=('QA', t, c)))
    adr = [VQR, VT, VT + 1, VT + 2]
    VSW = VX
    def qwait(t):
        s.e(W(('pro', 'q', t), vm={('QA', t, 3)}))
    def qprep(t):
        for c in range(4):
            s.e(*scale_ops(80 + 16 * t + 4 * c, 80 if t else 64, True))
        for c in range(4):
            s.e(f"ds_write_b128 v{VSW}, {vr(80 + 16*t + 4*c)} offset:{4096*t + 1024*c}")
        s.e(*q_frag_reads(t, adr))
    def mref(t):
        s.e(W(('pro', 'm', t), ds={('Q', t), ('K', 0)}), *mref_mfma(t), "s_nop 7", *mref_valu(t), "s_nop 1")
    if OPT['st0']:
        stamp(s)
    qload(0)
    s.e(f"s_add_u32 s{SK}, s6, s3", f"s_addc_u32 s{SK+1}, s7, 0", f"s_add_u32 s{SV}, s8, s3", f"s_addc_u32 s{SV+1}, s9, 0")
    blk(0, 0); qload(1)
    if not OPT['st0']:
        stamp(s)
    s.e(f"v_add_u32 v{VPF}, L_trans-L_pc, v{VPF}", f"v_min_u32 v{VPF}, L_final-L_pc, v{VPF}")
    s.e(f"s_mov_b32 s{sFlag}, {OPT['force']}", f"s_mov_b32 s{sMask}, 0xffff0000",
        f"s_mov_b32 s{sC}, {f32(math.log2(math.e) / math.sqrt(128.0))}", f"s_mov_b32 s{sC+1}, s{sC}",
        f"s_mul_i32 s{sStage}, s{sW}, {STW}", f"s_add_u32 s{sStage}, s{sStage}, {STAGE}")
    for ks in range(4):
        s.e(f"v_add_u32 v{X}, {4*ks}, v{G}", f"v_xor_b32 v{X}, v{X}, v{Q16}", f"v_lshlrev_b32 v{X}, 4, v{X}",
            f"v_lshl_add_u32 v{VKA+ks}, v{Q16}, 8, v{X}")
    s.e(f"v_lshrrev_b32 v{X}, 2, v{L}", f"v_and_b32 v{Y}, 3, v{L}",
        f"v_lshlrev_b32 v{R}, 4, v{X}", f"v_lshl_add_u32 v{VOS}, v{Y}, 8, v{R}",
        f"v_lshlrev_b32 v{R}, 4, v{G}", f"v_lshl_add_u32 v{R}, v{Q16}, 8, v{R}", f"v_lshl_add_u32 v{R}, v{Y}, 6, v{R}",
        f"v_add_u32 v{VQR}, s{sStage}, v{R}", f"v_lshl_add_u32 v{VSW}, v{L}, 4, s{sStage}",
        f"v_lshl_add_u32 v{VSL}, v{L}, {2 if OPT['qw'] == 32 else 3}, s{sStage}", f"v_add_u32 v{VSL}, -1024, v{VSL}",
        f"v_lshl_add_u32 v{VTR}, v{G}, 8, s{sStage}", f"v_lshl_add_u32 v{VTR}, v{Y}, 6, v{VTR}",
        f"v_bfe_u32 v{R}, v{L}, 2, 2", f"v_lshl_add_u32 v{VTR}, v{R}, 3, v{VTR}",
        f"v_lshl_add_u32 v{VOW}, v{Q16}, 3, s{sStage}", f"v_lshl_add_u32 v{VOW}, v{G}, 10, v{VOW}",
        f"s_lshl_b32 s{sScr}, s{sW}, 8", f"s_add_u32 s{sScr}, s{sScr}, {LSCR}",
        f"v_lshl_add_u32 v{VLW}, v{L}, 2, s{sScr}", f"v_lshl_add_u32 v{VLR}, v{G}, 4, s{sScr}",
        f"v_lshlrev_b32 v{VFA}, 2, v{L}", f"v_add_u32 v{VFA}, {FLAGS}, v{VFA}", f"v_mov_b32 v{VF}, 0",
        f"ds_write_b32 v{VFA}, v{VF}", f"s_mov_b32 s{sExp}, 0", "s_mov_b32 s77, 0x10000" if OPT['cnt'] else "", f"s_mov_b32 s{sThr}, {f32(THR)}",
        f"v_lshlrev_b32 v{Y}, 3, v{Y}", f"v_lshl_add_u32 v{Y}, v{X}, 8, v{Y}", f"v_and_b32 v{X}, 7, v{X}")
    for db in range(8):
        s.e(f"v_xor_b32 v{R}, {db}, v{X}", f"v_lshl_add_u32 v{VVA+db}, v{R}, 5, v{Y}")
    s.e(f"v_and_b32 v{X}, 1, v{L}", f"v_mul_u32_u24 v{X}, 0xaaaa, v{X}", f"v_add_u32 v{VIDX}, 0x4444, v{X}",
        f"v_lshrrev_b32 v{X}, 1, v{Q16}", f"v_mov_b32 v{R}, 0x3f803f80")
    for a in range(NT):
        s.e(f"v_cmp_eq_u32 vcc, {a}, v{X}", "s_nop 1", f"v_cndmask_b32 v{Y}, 0, v{R}, vcc")
        for r in range(4):
            s.e(f"v_accvgpr_write_b32 a{APAT(a)+r}, v{Y}")
    for k in range(8):
        s.e(f"v_accvgpr_write_b32 a{AL(0)+k}, 0")
    for ks in range(1, 4):
        s.e(f"v_xor_b32 v{adr[ks]}, {64*ks}, v{VQR}")
    s.e("L_stubs:")
    qwait(0); stamp(s); blk(1, 0); qprep(0)
    s.e(W(('pro', 'b0'), vm={('DK', 0)}), "s_barrier", *k_reads(0), *k_reads(1))
    qload(2)
    mref(0)
    s.extend(flat(St(-1).G))
    s.e(W(('pro', 'k1'), ds={('K', 1)}))
    s.extend(flat(St(0).G))
    qwait(1); qload(3); qprep(1)
    s.e(W(('pro', 'b1'), vm={('DV', 0)}), "s_barrier")
    qload(4)
    s.e(*srd_rows(SQ, 4, 1), f"s_mov_b32 s{sCh}, 0", f"s_mov_b32 s{sCnt}, 7",
        f"s_mov_b32 s{sQM}, s{sStage}", f"s_add_u32 s{sQE}, s{sStage}, 20480")
    mref(1)
    st = {n: St(n) for n in range(1, 12)}
    fill(st[1].G, v_reads(0, 0))
    fill(st[2].G, v_reads(0, 1))
    st[2].L[7].put(W(('pro', 'v0'), ds=vtags(0, 0)))
    s.extend(flat(st[1].G + st[2].G))
    qwait(2); blk(0, 1); qprep(2); mref(2)
    s.extend(flat(st[3].G + st[4].G))
    qwait(3); blk(1, 1); qprep(3); mref(3)
    s.extend(flat(st[5].G + st[6].G))
    qwait(4); blk(0, 2)
    s.e(QM0, "s_nop 0", qb_load(0), *QADV)
    qprep(4); mref(4)
    stamp(s)
    s.e(W(('pro', 'b2'), vm={('DK', 1)}), "s_barrier")
    for n in range(7, 12):
        ring(st[n], ('peel', n), refill=False)
    for p, (n, g) in enumerate(((7, 13), (8, 13), (9, 9), (9, 13))):
        d = dma(1, 2, p)
        st[n].L[g - 2].put(d[0]); st[n].L[g].put(d[1]); st[n].L[g + 1].put(d[2])
    st[9].L[15].put(QM0); st[10].L[1].put(qb_load(1))
    for n in range(7, 12):
        s.extend(flat(st[n].G))
    stamp(s)
    return s

def body(name, n0, extras):
    st = [ring(St(n0 + k), (name, k)) for k in range(20)]
    if not OPT['nopf']:
        st[17].L[9].put(I(f"global_load_dword v{VPD}, v{VPD}, s[{sPC}:{sPC+1}]", tag='pf'))
        fill(st[14].G + st[15].G + st[16].G, [f"s_cmp_eq_u32 s{sCnt}, 2", f"s_cselect_b32 s{sScr}, -1, 0", 1,
                                               f"v_and_b32 v{VPD}, s{sScr}, v{VPF}"])
    st[19].L[10].put(f"s_sub_u32 s{sCnt}, s{sCnt}, 1")
    st[19].L[12].put(f"s_cmp_lg_u32 s{sCnt}, 0")
    ops = []
    for c, (k, g) in enumerate(((3, 5), (7, 9), (13, 5))):
        o, slot, m0, adv = extras(c)
        if OPT['noex']:
            continue
        st[k].L[g].put(slot)
        if m0:
            st[k].L[g - 3].put(m0)
        fill(st[k - 1].G, adv)
        if name == 'A':
            ops += o
        else:
            fill(st[k - 2].G + st[k - 1].G + st[k].upto(g), o)
    if ops:
        fill(sum((x.G for x in st), []), ops)
    s = Seg()
    stamp(s, 2)
    s.extend(flat(sum((x.G for x in st), [])))
    s.e(f"s_cbranch_scc1 L_{name}")
    return s

def body_a(trip):
    def extras(c):
        i = 3 * trip + c - 1
        x = VX + 4 * (c & 1)
        sc = scale_ops(x, VT, False)
        if OPT['qw'] == 32:
            rd = [f"ds_read2st64_b32 {vr(x+2*h, 2)}, v{VSL} offset0:{4*c+2*h} offset1:{4*c+2*h+1}" for h in range(2)]
            wr = [[f"ds_write_b32 v{VSL}, v{x+2*h+k} offset:{1024*c + 256*(2*h+k)}" for k in range(2)] for h in range(2)]
        else:
            rd = [f"ds_read_b64 {vr(x+2*h, 2)}, v{VSL} offset:{1024*c + 512*h}" for h in range(2)]
            wr = [[f"ds_write_b64 v{VSL}, {vr(x+2*h, 2)} offset:{1024*c + 512*h}"] for h in range(2)]
        ops = [W(('A', 'q', c), vm={('QB', i)})] + [I(r, tag=('QR', i)) for r in rd]
        ops += [6, W(('A', 'r', c), ds={('QR', i)})] + sc[:10] + wr[0] + sc[10:] + wr[1]
        ops += [f"v_add_u32 v{VSL}, 3072, v{VSL}"] if c == 2 else []
        return ops, qb_load(i + 3), QM0, QADV
    return body('A', 12 + 20 * trip, extras)

def body_b(trip):
    def extras(c):
        i = 3 * trip + c
        ops = [I(f"ds_read_b64_tr_b16 {vr(VX+2*h, 2)}, v{VTR} offset:{1024*c + 32*h}", tag=('OA', i)) for h in range(2)]
        ops += [7, W(('B', 'o', c), ds={('OA', i)})]
        ops += [f"v_add_u32 v{VTR}, 3072, v{VTR}"] if c == 2 else []
        st = I(f"buffer_store_dwordx4 {vr(VX)}, v{VOS}, {sr(SO)}, s{sCh} offen{POL[OPT['oapol']]}")
        return ops, st, None, QADV[:1]
    return body('B', 172 + 20 * trip, extras)

def span(st, a, ga, b, gb):
    G = sum((st[n].G for n in range(a, b + 1)), [])
    return G[G.index(st[a].L[ga]):G.index(st[b].L[gb])]

def transition():
    s = Seg()
    stamp(s)
    st = {n: ring(St(n), ('tr', n)) for n in range(152, 172)}
    adr = [VQR, VT, VT + 1, VT + 2]
    mstep = [157, 159, 161, 163, 165]
    for t in range(NT):
        x = st[mstep[t]]
        x.L[12].put(W(('tr', 'mq', t), ds={('Q', t), ('K', 32)} if t else {('Q', 0), ('K32a',)}))
        k = x.G.index(x.L[14])
        x.G[k:k] = [Gap(m) for m in mref_mfma(t)]
    for g in st[157].G:
        for i in g.mem:
            if getattr(i, 'tag', None) == ('K', 32) and i.wr & {f"a{AK(0, 0, 3)}"}:
                i.tag2 = ('K32a',)
    fill(span(st, 153, 2, 154, 12), [f"v_xor_b32 v{adr[ks]}, {64*ks}, v{VQR}" for ks in range(1, 4)] + q_frag_reads(0, adr))
    qwin = [None, (154, 12, 156, 0), (156, 0, 157, 0), (157, 14, 159, 10), (159, 10, 162, 0)]
    for t in range(1, NT):
        fill(span(st, *qwin[t]), q_frag_reads(t, adr))
    for t in range(NT):
        fill(span(st, mstep[t] + 1, 2, mstep[t] + 1, 15), mref_valu(t))
    lwin = [(153, 2, 154, 6), (155, 0, 156, 7), (159, 0, 160, 0), (163, 0, 163, 13), (165, 12, 166, 8)]
    pk = [(154, 14), (157, 14), (160, 4), (164, 4), (166, 14)]
    cwin = [(154, 15, 157, 14), (157, 15, 160, 4), (160, 5, 164, 4), (164, 5, 166, 14), (166, 15, 170, 6)]
    for t in range(NT):
        fill(span(st, *lwin[t]), l_ops(0, t, ('tr',)))
        burst(st[pk[t][0]].L[pk[t][1]], ('tr',), t)
    for t in range(NT):
        fill(span(st, *cwin[t]), cvt_write(t))
    fill(span(st, 167, 0, 169, 0), srd_rows(SO, 10, 0) + [f"s_mov_b32 s{sCh}, -1024", f"s_mov_b32 s{sCnt}, 7"])
    fill(span(st, 169, 0, 171, 0), flag_ops(1))
    fill(span(st, 167, 0, 171, 0), [f"v_lshlrev_b32 v{VPF}, 7, v{VLN}", f"v_add_u32 v{VPF}, L_final-L_pc, v{VPF}",
                                    f"v_min_u32 v{VPF}, L_code_end-L_pc-4, v{VPF}"])
    for n in range(152, 172):
        s.extend(flat(st[n].G))
    stamp(s)
    return s

def finale():
    s = Seg()
    stamp(s)
    st = {n: St(n) for n in range(312, 322)}
    ring(st[312], ('fin', 312)); ring(st[313], ('fin', 313), refill=False)
    fill(st[312].G, srd_rows(SO, 10, 1))
    fill(st[312].G, [f"v_add_u32 v{VOW}, {-5*4096}, v{VOW}", f"v_add_u32 v{VTR}, {-7*3072}, v{VTR}"])
    def readback(t):
        return [I(f"ds_read_b64_tr_b16 {vr(O(t, c)+2*h, 2)}, v{VTR} offset:{4096*t + 1024*c + 32*h}", tag=('OB', t, c))
                for c in range(4) for h in range(2)]
    def stores(t, gapn):
        r = []
        for c in range(4):
            r += [W(('fin', 'o', t, c), ds={('OB', t, c)}),
                  f"buffer_store_dwordx4 {vr(O(t, c))}, v{VOS}, {sr(SO)}, s{sT+t} offen offset:{1024*c}{POL[OPT['opol']]}"]
            if gapn:
                r.append(gapn)
        return r
    for t in range(3):
        n = 312 + 2 * t
        fill(span(st, n, 14, n + 1, 4), l_ops(1, t, ('fin',)))
        burst(st[n + 1].L[8], ('fin',), t, range(4))
        fill(span(st, n + 1, 9, n + 2, 3), cvt_write(t, range(2)))
        burst(st[n + 2].L[3], None, t, range(4, 8))
        fill(span(st, n + 2, 4, n + 2, 10), cvt_write(t, range(2, 4)) + readback(t))
        fill(st[n + 2].frm(14) + st[n + 3].G, stores(t, 2))
    fill(span(st, 318, 14, 319, 2), l_ops(1, 3, ('fin',)))
    burst(st[319].L[5], ('fin',), 3, range(4))
    fill(st[319].frm(6) + st[320].G[:3], cvt_write(3, range(2)))
    burst(st[320].L[2], None, 3, range(4, 8))
    fill(st[320].frm(3)[:3], l_ops(1, 4, ('fin',)))
    fill(st[320].frm(3) + st[321].G[:2], cvt_write(3, range(2, 4)) + readback(3))
    burst(st[321].L[3], ('fin',), 4, range(4))
    fill(st[321].frm(4), cvt_write(4, range(2)))
    for n in range(312, 322):
        s.extend(flat(st[n].G))
    stamp(s)
    s.e(*stores(3, 0), *pk_burst(4, range(4, 8)), *cvt_write(4, range(2, 4))[:-1], *readback(4), *flag_ops(2), *stores(4, 0))
    stamp(s)
    if OPT['stamps']:
        s.e("s_waitcnt vmcnt(0)")
        stamp(s)
        s.e(f"v_lshlrev_b32 v0, 2, v{VLN}",
            f"s_lshl_b32 s3, s{sW}, 8", "v_add_u32 v0, s3, v0", f"v_add_u32 v1, {STAMPS}, v0",
            "ds_read_b32 v2, v1", "s_lshl_b32 s3, s2, 10", "v_add_u32 v0, s3, v0", "s_waitcnt lgkmcnt(0)",
            f"global_store_dword v0, v2, s[{sStamp}:{sStamp+1}]")
    if OPT['probe'] >= 0:
        a, b = OPT['pa'], OPT['pb']
        s.e(f"v_mov_b32 v4, s{sW}", "v_lshlrev_b32 v0, 8, v4", f"v_add_u32 v0, {STAMPS}, v0",
            "ds_read_b64 v[2:3], v0", f"ds_read_b64 v[4:5], v0 offset:{8*a}", f"ds_read_b64 v[6:7], v0 offset:{8*b}",
            "s_waitcnt lgkmcnt(0)", "v_sub_u32 v6, v6, v4", "v_sub_u32 v7, v7, v5")
        if OPT['probe'] == 3:
            s.e("v_subrev_u32 v6, s64, v4", "v_lshlrev_b32 v6, 4, v6")
        elif OPT['probe'] == 4:
            s.e("s_sub_u32 s78, s78, s64", "s_lshl_b32 s78, s78, 4", "v_mov_b32 v6, s78")
        else:
            s.e(["v_mov_b32 v6, 5000", "v_lshlrev_b32 v6, 2, v6", "v_lshrrev_b32 v6, 3, v7"][OPT['probe']])
        s.e("v_add_u32 v6, 10000, v6", "s_nop 1", "v_readfirstlane_b32 s60, v6", "v_readfirstlane_b32 s61, v2", "s_nop 3",
            "s_mov_b32 s61, s64" if OPT['early'] else "s_nop 0",
            "L_spin:", "s_memrealtime s[62:63]", "s_waitcnt lgkmcnt(0)", "s_sub_u32 s62, s62, s61",
            "s_cmp_lt_u32 s62, s60", "s_cbranch_scc1 L_spin")
    s.e(f"s_cmp_lg_u32 s{sFlag}, 0", "s_cbranch_scc1 L_slow", "L_end:", "s_endpgm")
    return s

def slow_path():
    QF, KF, VF, SS, PP, NN, OO = 0, 16, 48, 80, 88, 92, 96
    AG, AL_, AT, AO, MX, LS, T = 128, 129, 130, 131, 132, 133, 136
    sP, sTile, sKo, sEnd = 70, 71, 72, 73
    head, tile, mx, mid, blk, out = Seg(), Seg(), Seg(), Seg(), Seg(), Seg()
    head.e("L_slow:", "s_waitcnt vmcnt(0) lgkmcnt(0)",
           f"v_and_b32 v{T}, 15, v{VLN}", f"v_lshrrev_b32 v{T+1}, 4, v{VLN}",
           f"v_lshlrev_b32 v{AG}, 4, v{T+1}", f"v_lshl_add_u32 v{AG}, v{T}, 8, v{AG}",
           f"v_lshlrev_b32 v{AO}, 3, v{T+1}", f"v_lshl_add_u32 v{AO}, v{T}, 8, v{AO}",
           f"v_lshlrev_b32 v{AL_}, 4, v{VLN}",
           f"v_lshrrev_b32 v{T}, 2, v{VLN}", f"v_and_b32 v{T+1}, 3, v{VLN}",
           f"v_lshl_add_u32 v{AT}, v{T}, 8, s{sStage}", f"v_lshl_add_u32 v{AT}, v{T+1}, 3, v{AT}",
           f"s_mov_b32 s{sP}, 0",
           "L_slow_pass:", f"s_lshr_b32 s{sTmp}, s{sFlag}, s{sP}", f"s_bitcmp1_b32 s{sTmp}, 0", "s_cbranch_scc0 L_slow_next",
           *srd_rows(SQ, 4, f"s{sP}"), *srd_rows(SO, 10, f"s{sP}"), f"s_mov_b32 s{sTile}, 0")
    tile.e("L_slow_tile:")
    tile.e(*[f"buffer_load_dwordx4 {vr(QF+4*ks)}, v{AG}, {sr(SQ)}, s{sTile} offen offset:{64*ks}" for ks in range(4)],
           f"s_mul_i32 s{sKo}, s{sP}, {HEADK}", f"s_add_u32 s{sEnd}, s{sKo}, {HEADK}",
           f"v_mov_b32 v{MX}, 0xff800000", "s_waitcnt vmcnt(0)")
    for ks in range(4):
        tile.e(*scale_ops(QF + 4 * ks, T, True))
    def chain(d, k, c):
        return [f"v_mfma_f32_16x16x32_bf16 {vr(d)}, {vr(k+4*ks)}, {vr(QF+4*ks)}, {c if ks == 0 else vr(d)}" for ks in range(4)]
    def across(op, r):
        x = []
        for sw in ("v_permlane16_swap_b32", "v_permlane32_swap_b32"):
            x += [f"v_mov_b32 v{T}, v{r}", "s_nop 1", f"{sw} v{r}, v{T}", f"{op} v{r}, v{r}, v{T}"]
        return x
    mx.e("L_slow_max:")
    mx.e(*[f"buffer_load_dwordx4 {vr(KF+4*ks)}, v{AG}, {sr(SK)}, s{sKo} offen offset:{64*ks}" for ks in range(4)],
         f"s_add_u32 s{sKo}, s{sKo}, 4096", "s_waitcnt vmcnt(0)", *chain(SS, KF, "0"), "s_nop 7",
         f"v_max3_f32 v{MX}, v{MX}, v{SS}, v{SS+1}", f"v_max3_f32 v{MX}, v{MX}, v{SS+2}, v{SS+3}",
         f"s_cmp_lt_u32 s{sKo}, s{sEnd}", "s_cbranch_scc1 L_slow_max")
    mid.e(*across("v_max_f32", MX), *[f"v_sub_f32 v{NN+k}, 0, v{MX}" for k in range(4)],
          *[f"v_mov_b32 v{OO+k}, 0" for k in range(32)], f"v_mov_b32 v{LS}, 0", f"s_mul_i32 s{sKo}, s{sP}, {HEADK}")
    blk.e("L_slow_blk:")
    for j in range(2):
        blk.e(f"s_add_u32 m0, s{sStage}, {4096*j}",
              *[f"buffer_load_dwordx4 {vr(KF+16*j+4*ks)}, v{AG}, {sr(SK)}, s{sKo} offen offset:{64*ks}" for ks in range(4)],
              *[f"buffer_load_dwordx4 v{AL_}, {sr(SV)}, s{sKo} offen offset:{1024*i} lds" for i in range(4)],
              f"s_add_u32 s{sKo}, s{sKo}, 4096")
    blk.e("s_waitcnt vmcnt(0)")
    blk.e(*[f"ds_read_b64_tr_b16 {vr(VF+4*db+2*u, 2)}, v{AT} offset:{4096*u + 32*db}" for db in range(8) for u in range(2)])
    blk.e(*chain(SS, KF, vr(NN)), *chain(SS + 4, KF + 16, vr(NN)), "s_nop 7",
          *[f"v_exp_f32 v{SS+k}, v{SS+k}" for k in range(8)], "s_nop 0",
          *[f"v_add_f32 v{LS}, v{LS}, v{SS+k}" for k in range(8)],
          *[f"v_cvt_pk_bf16_f32 v{PP+k}, v{SS+2*k}, v{SS+2*k+1}" for k in range(4)],
          "s_waitcnt lgkmcnt(0)", "s_nop 0",
          *[f"v_mfma_f32_16x16x32_bf16 {vr(OO+4*db)}, {vr(VF+4*db)}, {vr(PP)}, {vr(OO+4*db)}" for db in range(8)],
          f"s_cmp_lt_u32 s{sKo}, s{sEnd}", "s_cbranch_scc1 L_slow_blk")
    out.e(*across("v_add_f32", LS), f"v_rcp_f32 v{LS}, v{LS}", "s_nop 0",
          *[f"v_mul_f32 v{OO+k}, v{OO+k}, v{LS}" for k in range(32)])
    for db in range(8):
        b = OO + 4 * db
        out.e(f"v_cvt_pk_bf16_f32 v{b}, v{b}, v{b+1}", f"v_cvt_pk_bf16_f32 v{b+1}, v{b+2}, v{b+3}",
              f"buffer_store_dwordx2 {vr(b, 2)}, v{AO}, {sr(SO)}, s{sTile} offen offset:{32*db}")
    out.e(f"s_add_u32 s{sTile}, s{sTile}, 4096", f"s_cmp_lt_u32 s{sTile}, {4096*NT}", "s_cbranch_scc1 L_slow_tile")
    end = Seg()
    end.e("L_slow_next:", f"s_add_u32 s{sP}, s{sP}, 1", f"s_cmp_lt_u32 s{sP}, 2", "s_cbranch_scc1 L_slow_pass", "s_endpgm")
    once = tile + mx + mx + mid + blk + blk + out
    return Seg(head + tile + mx + mid + blk + out + end), Seg(head + once + once + end)

def est_cycles(seq):
    tot, cur, nsc, inm = 0, 0, 0, False
    for i in seq:
        if i.kind == 'pseudo':
            continue
        if i.kind == 'mfma':
            tot += max(16, cur) if inm else cur
            cur, nsc, inm, sm = 8, 0, True, 'smfmac' in i.op
        elif rank(i) == 0:
            nsc += 1
            cur += cost(i) - (4 if (inm and nsc == 1 and cur == 8) else 0)
        else:
            if i.op.startswith('v_pk') and inm:
                cur = max(cur, 24)
            if inm and sm and rank(i) == 2:
                cur = max(cur, 12)
            cur += cost(i)
    return tot + (max(16, cur) if inm else cur)

def check_frags(trace):
    hold, probs, nq, npv = {}, [], 0, 0
    for i in trace:
        if hasattr(i, 'use'):
            for r in i.wr:
                hold[r] = i.use[:2]
        if i.op == 'v_mfma_f32_16x16x32_bf16':
            d = int(i.dst[0][1:])
            if S0 <= d < P0:
                want = ('K', item(nq // 8)[1]); nq += 1
            elif d < S0:
                want = ('V', item(npv // 16 * 2)[1] + (npv & 1)); npv += 1
            else:
                want = ('K', 0 if nq < 1000 else 32)
            for r in i.ab:
                if r[0] == 'a' and int(r[1:]) >= 80 and hold.get(r) != want:
                    probs.append(f"fragment {r} holds {hold.get(r)} but {want} is needed: {i.text}")
    return probs

def check_m0(trace):
    cur, probs = None, []
    for i in trace:
        if 'm0' in i.wr:
            cur = i.text
        if hasattr(i, 'm0') and i.m0 != cur:
            probs.append(f"m0 mismatch at {i.tag}: have '{cur}' want '{i.m0}'")
    return probs

def build():
    pro, trn, fin = prologue(), transition(), finale()
    A = [body_a(k) for k in range(7)]
    B = [body_b(k) for k in range(7)]
    tr = Seg(pro + sum(A, []) + trn + sum(B, []) + fin)
    apply_waits(tr, resolve_waits(tr))
    for X in (A, B):
        for k in range(1, 7):
            assert [i.text for i in X[k]] == [i.text for i in X[0]], "loop body not periodic"
    slow, slow_tr = slow_path()
    probs = check_ring(tr) + check_m0(tr) + check(Seg(tr[:-1] + slow_tr), "trace") + check_frags(tr)
    probs = [p for p in probs if 'global_load_dword' not in p.split('->')[-1]]
    for p in sorted(set(probs))[:40]:
        print(p, file=sys.stderr)
    if probs:
        print(len(probs), "problems", file=sys.stderr)
    print("est cycles: pro", est_cycles(pro), "A", est_cycles(A[0]), "trn", est_cycles(trn), "B", est_cycles(B[0]),
          "fin", est_cycles(fin), "total", est_cycles(tr), file=sys.stderr)
    text = Seg(pro)
    for name, X, cont, nxt in (('A', A, 'L_trans', trn), ('B', B, 'L_final', fin)):
        if OPT['al']:
            text.e(".p2align 6", *["s_nop 0"] * (OPT['al'] - 1))
        text.e(f"L_{name}:"); text.extend(X[0])
        text.e(f"{cont}:"); text.extend(nxt)
    k = [i.text for i in text].index("L_stubs:")
    text[k:k + 1] = stubs()
    hdr = open("standalone__mha_softmax__near_ridge.s.ref").read().split("; Override launch")[0]
    out = hdr + "; @launch grid=(256,1,1) block=(256,1,1) lds=163840\n"
    out += f'.amdgcn_target "amdgcn-amd-amdhsa--gfx950"\n.text\n.globl {KN}\n.p2align 8\n.type {KN},@function\n{KN}:\n'
    for i in text:
        out += ("" if i.kind == 'pseudo' else "    ") + i.text + "\n"
    out += ".p2align 7\n" + "L_code_end:\n"
    for i in slow:
        out += ("" if i.kind == 'pseudo' else "    ") + i.text + "\n"
    out += f'''.section .rodata,"a"
.p2align 6
.amdhsa_kernel {KN}
  .amdhsa_next_free_vgpr 512
  .amdhsa_next_free_sgpr 96
  .amdhsa_accum_offset 256
  .amdhsa_group_segment_fixed_size 0
  .amdhsa_kernarg_size 48
  .amdhsa_user_sgpr_count 2
  .amdhsa_user_sgpr_kernarg_segment_ptr 1
  .amdhsa_system_sgpr_workgroup_id_x 1
.end_amdhsa_kernel
'''
    return out

if __name__ == "__main__":
    path = sys.argv[1]
    for a in sys.argv[2:]:
        k, v = a.split("=")
        assert k in OPT, k
        OPT[k] = int(v)
    open(path, "w").write(build())
```
